```python
import torch

def _softmax(x, axis=-1):
    return torch.softmax(x, dim=axis)
def _gelu(x):
    return torch.nn.functional.gelu(x, approximate="tanh")
def _silu(x):
    return torch.nn.functional.silu(x)
def _sigmoid(x):
    return torch.sigmoid(x)
def _layernorm(x, axis=-1, eps=1e-5):
    m = x.mean(dim=axis, keepdim=True)
    v = x.var(dim=axis, keepdim=True, unbiased=False)
    return (x - m) / torch.sqrt(v + eps)
def _scatter_add(tgt, idx, src, axis=0):
    return tgt.clone().index_add_(axis, idx, src)
def _segment_sum(src, seg, n):
    out = torch.zeros((n,) + src.shape[1:], dtype=src.dtype)
    return out.index_add_(0, seg, src)
def _pad(x, pw):
    flat = tuple(v for pair in reversed(pw) for v in pair)
    return torch.nn.functional.pad(x, flat)

kernel_name = 'standalone__global_local_windowed_global_tokens__prompt'

def setup_inputs():

    _w = (lambda a: (lambda t: t.to(torch.bfloat16) if t.is_floating_point() else t)(torch.as_tensor(a)))
    B, H, S, D = 1, 32, 2048, 192
    return {
        "q": _w((lambda *s: torch.randn(*s, dtype=torch.bfloat16) * 0.8)(B, H, S, D)),
        "k": _w((lambda *s: torch.randn(*s, dtype=torch.bfloat16) * 0.8)(B, H, S, D)),
        "v": _w((lambda *s: torch.randn(*s, dtype=torch.bfloat16) * 0.05)(B, H, S, D)),
        "window": 32,
        "n_global": 2,
    }

def reference(q, k, v, window, n_global):
    B, H, S, D = q.shape
    scale = D ** -0.5
    scores = torch.einsum("bhqd,bhkd->bhqk", q, k) * scale
    idx = torch.arange(S)
    dist = idx[:, None] - idx[None, :]
    local = (dist <= window) & (dist >= -window)
    is_global_q = (idx < n_global)[:, None]
    is_global_k = (idx < n_global)[None, :]
    mask = local | is_global_q | is_global_k
    scores = torch.where(mask[None, None], scores, -1e9)
    p = _softmax(scores, axis=-1)
    return torch.einsum("bhqk,bhkd->bhqd", p, v)
```

```python
import re

def regs_of(tok):
    tok = tok.strip()
    tok = tok.lstrip('-')
    if tok.startswith('abs(') or tok.startswith('|'):
        tok = tok.replace('abs(', '').replace(')', '').replace('|', '')
    m = re.fullmatch(r'([vsa])(\d+)', tok)
    if m: return {(m.group(1), int(m.group(2)))}
    m = re.fullmatch(r'([vsa])\[(\d+):(\d+)\]', tok)
    if m: return {(m.group(1), i) for i in range(int(m.group(2)), int(m.group(3)) + 1)}
    if tok == 'vcc': return {('s', 'vcc')}
    if tok == 'm0': return {('s', 'm0')}
    if tok == 'exec': return {('s', 'exec')}
    return set()

TRANS = ('v_exp_f32', 'v_log_f32', 'v_rcp_f32', 'v_rsq_f32', 'v_sqrt_f32')

class Ins:
    def __init__(self, text):
        self.text = text
        t = text.split(';')[0].strip()
        self.label = t.endswith(':')
        self.directive = t.startswith('.')
        parts = t.split(None, 1)
        self.op = parts[0] if parts else ''
        rest = parts[1] if len(parts) > 1 else ''
        ops, depth, cur = [], 0, ''
        for ch in rest:
            if ch == '[': depth += 1
            if ch == ']': depth -= 1
            if ch == ',' and depth == 0:
                ops.append(cur.strip()); cur = ''
            else: cur += ch
        if cur.strip(): ops.append(cur.strip())
        self.mods = ''
        if ops:
            last = ops[-1].split(None, 1)
            ops[-1] = last[0]
            self.mods = last[1] if len(last) > 1 else ''
        self.ops = ops
        op = self.op
        R = [regs_of(o) for o in ops]
        allr = lambda idx: set().union(*[R[i] for i in idx]) if idx else set()
        n = len(ops)
        self.w, self.r = set(), set()
        self.kind = 'other'
        self.srcc = set()
        if self.label or self.directive or not op:
            self.kind = 'none'
        elif op.startswith('v_mfma'):
            self.kind = 'mfma'; self.w = R[0]; self.r = allr([1, 2, 3]); self.srcc = R[3]; self.ab = allr([1, 2])
        elif op.startswith('ds_read'):
            self.kind = 'dsr'; self.w = R[0]; self.r = R[1]
        elif op.startswith('ds_write'):
            self.kind = 'dsw'; self.r = allr(range(n))
        elif op.startswith('buffer_load'):
            if ' lds' in (' ' + self.mods):
                self.kind = 'dma'; self.r = allr(range(n)) | {('s', 'm0')}
            else:
                self.kind = 'vload'; self.w = R[0]; self.r = allr(range(1, n))
        elif op.startswith('global_load'):
            self.kind = 'vload'; self.w = R[0]; self.r = allr(range(1, n))
        elif op.startswith('buffer_store') or op.startswith('global_store'):
            self.kind = 'vstore'; self.r = allr(range(n))
            self.data = R[0] if op.startswith('buffer') else R[1]
            self.wide = 'x4' in op or 'x3' in op
        elif op.startswith('buffer_atomic'):
            self.kind = 'vload'; self.r = allr(range(n)); self.w = R[0] if 'sc0' in self.mods else set()
        elif op.startswith('v_cmp'):
            self.kind = 'valu'; self.w = R[0]; self.r = allr(range(1, n))
        elif op.startswith('v_permlane'):
            self.kind = 'valu'; self.w = allr([0, 1]); self.r = allr([0, 1]); self.perm = True
        elif op.startswith('v_readfirstlane') or op.startswith('v_readlane'):
            self.kind = 'valu'; self.w = R[0]; self.r = allr(range(1, n)); self.rl = True
        elif op.startswith('v_writelane'):
            self.kind = 'valu'; self.w = R[0]; self.r = allr(range(0, n))
        elif op.startswith('v_nop'):
            self.kind = 'valu'
        elif op.startswith('v_'):
            self.kind = 'valu'; self.w = R[0]; self.r = allr(range(1, n))
            if op.startswith('v_fmac') or op.startswith('v_pk_fmac'): self.r |= R[0]
            if op.startswith('v_cndmask') and n == 3: self.r |= {('s', 'vcc')}
            if '_co_' in op: self.w |= R[1]
        elif op in ('s_waitcnt', 's_barrier', 's_nop', 's_endpgm', 's_branch', 's_setprio', 's_sleep') or op.startswith('s_cbranch'):
            self.kind = 'ctl'
        elif op.startswith('s_cmp'):
            self.kind = 'salu'; self.r = allr(range(n))
        elif op.startswith('s_setpc'):
            self.kind = 'ctl'; self.r = R[0]
        elif op.startswith('s_load') or op.startswith('s_mem'):
            self.kind = 'smem'; self.w = R[0]; self.r = allr(range(1, n))
        elif op.startswith('s_'):
            self.kind = 'salu'; self.w = R[0]; self.r = allr(range(1, n))
        else:
            raise ValueError('unknown instruction: ' + text)
        self.trans = op.replace('_e32', '').replace('_e64', '') in TRANS
        self.perm = op.startswith('v_permlane')
        self.rl = op.startswith('v_readfirstlane') or op.startswith('v_readlane')
        self.dpp = 'row_' in self.mods or 'quad_perm' in self.mods
    def states(self):
        if self.kind == 'none': return 0
        if self.op == 's_nop': return int(self.ops[0]) + 1
        return 1

def vonly(s): return {x for x in s if x[0] in 'va'}
def sonly(s): return {x for x in s if x[0] == 's'}

def need(prod, cons):
    n = 0
    pk, ck = prod.kind, cons.kind
    vm = ck in ('vload', 'vstore', 'dma')
    if pk == 'valu':
        wv, ws = vonly(prod.w), sonly(prod.w)
        if ck == 'mfma' and wv & cons.r: n = max(n, 2)
        if ck == 'valu':
            if cons.perm and wv & cons.r: n = max(n, 2)
            if cons.dpp and wv & cons.r: n = max(n, 2)
            if cons.rl and wv & cons.r: n = max(n, 1)
            if prod.trans and wv & cons.r: n = max(n, 1)
            if ws & cons.r: n = max(n, 4 if (cons.rl or cons.op.startswith('v_writelane')) else 2)
        if prod.trans and wv & cons.r: n = max(n, 1)
        if vm and ws & cons.r: n = max(n, 5)
        if ck in ('salu', 'ctl', 'smem') and ws & cons.r: n = max(n, 2)
    if pk == 'mfma':
        d = prod.w
        if ck == 'mfma':
            if d & cons.ab: n = max(n, 8)
            if d & cons.srcc and d != cons.srcc: n = max(n, 6)
            if d & cons.w and d != cons.w: n = max(n, 6)
            if d == cons.w and not (d & cons.srcc): n = max(n, 6)
        elif ck in ('valu', 'dsr', 'dsw', 'vload', 'vstore', 'dma'):
            if d & (cons.r | cons.w): n = max(n, 8)
        if ck == 'valu' and prod.srcc & cons.w: n = max(n, 3)
    if pk == 'salu' and ('s', 'm0') in prod.w and ck == 'dma': n = max(n, 1)
    if pk == 'vstore' and prod.wide and prod.data & cons.w:
        n = max(n, 2 if ck == 'valu' else 1)
    return n

class Block:
    def __init__(self, name=''):
        self.name = name
        self.out = []
        self.q = []
        self.smem = set()
    def raw(self, ins):
        dist = 0
        pad = 0
        for p in reversed(self.out):
            if dist >= 12: break
            if p.kind == 'none': continue
            nd = need(p, ins)
            if nd > dist: pad = max(pad, nd - dist)
            dist += p.states()
        if pad:
            self.out.append(Ins(f's_nop {pad-1}'))
        self.out.append(ins)
    def __call__(self, text):
        for line in text.split('\n'):
            line = line.strip()
            if not line or line.startswith(';'): continue
            ins = Ins(line)
            if ins.op == 's_waitcnt':
                m = re.search(r'lgkmcnt\((\d+)\)', line)
                if m:
                    k = int(m.group(1))
                    if k == 0: self.smem = set()
                    self.q = self.q[len(self.q) - k:] if k and k < len(self.q) else ([] if k == 0 else self.q)
                self.raw(ins); continue
            touch = ins.r | ins.w
            if touch & self.smem:
                self.raw(Ins('s_waitcnt lgkmcnt(0)')); self.q = []; self.smem = set()
            idx = -1
            for i, d in enumerate(self.q):
                if d & touch: idx = i
            if idx >= 0:
                k = len(self.q) - 1 - idx
                assert not self.smem
                self.raw(Ins(f's_waitcnt lgkmcnt({k})'))
                self.q = self.q[idx + 1:]
            if ins.kind in ('dsr', 'dsw'):
                assert not self.smem, 'mixing smem and ds'
                if len(self.q) >= 15:
                    self.raw(Ins('s_waitcnt lgkmcnt(14)')); self.q = self.q[-14:]
                self.q.append(set(ins.w))
            if ins.kind == 'smem': self.smem |= ins.w
            self.raw(ins)
    def drain(self):
        if self.q or self.smem: self('s_waitcnt lgkmcnt(0)')
    def text(self):
        return '\n'.join(('' if i.label else '    ') + i.text for i in self.out)

def check_trace(seq):
    errs = []
    real = [i for i in seq if i.kind != 'none']
    for j, c in enumerate(real):
        dist = 0
        for p in reversed(real[max(0, j - 14):j]):
            if need(p, c) > dist: errs.append((p.text, c.text, need(p, c), dist))
            dist += p.states()
            if dist >= 12: break
    return errs
```

```python
import sys, argparse
from asmlib import *

NAME = 'standalone__global_local_windowed_global_tokens__prompt_kernel'
UNIT = 6144
VOFF = 12 * UNIT
STG = 24 * UNIT
VG = STG + 8192
LDS_TOTAL = VG + 1024
HEADB = 786432
TENSB = 25165824
CBITS = 0x3dd53b95

def vr(a, n=1): return f'v{a}' if n == 1 else f'v[{a}:{a+n-1}]'
def sr(a, n=1): return f's{a}' if n == 1 else f's[{a}:{a+n-1}]'

SQ, SK, SV, SO, SWS, SDBG = 4, 8, 12, 16, 20, 24
sW, sHEAD, sCH, sDIR, sW0, sSTEP, sHB = 28, 29, 30, 31, 32, 33, 34
sT0, sT1, sT2, sT3, sT4 = 35, 36, 37, 38, 39
sRET = 40
sC = 42
sOO = 43
sOFF = 44
sWL = 49
sMF, sML, sM1, sM2, sTRI, sMG = 50, 58, 66, 74, 82, 90
sRING = 92
sX = 93
sSTAMP = 96

vP = 1
vQO = 4
vOS, vOS0 = 5, 6
vSW = 7
vSR = 11
vLK = 13
vLV = 15
vVG = 19
vAK = 20
vAV = 30
vT = 50
vONE = 56
vKG = 60
vQ = 84
vQS = 108
vS = 132
vPP = 156
vO = 168
vL = 216
vF = 220
vST = 252

class VM:
    def __init__(self): self.q = []
    def add(self, tag, n): self.q += [tag] * n; assert len(self.q) <= 63, len(self.q)
    def wait(self, b, tags):
        idx = max([i for i, t in enumerate(self.q) if t in tags], default=-1)
        if idx < 0: return
        n = len(self.q) - 1 - idx
        self.q = self.q[idx + 1:]
        b(f's_waitcnt vmcnt({n})')

def gen(cfg):
    ntl = cfg.ntl; nts = cfg.nts; ntq = cfg.ntq
    blocks = {}
    def stamp(b, i):
        if cfg.stamps:
            b.drain()
            b(f's_memrealtime {sr(sSTAMP,2)}')
            b('s_waitcnt lgkmcnt(0)')
            b(f'v_writelane_b32 v{vST}, s{sSTAMP}, {i}')
    def call(b, name):
        b.drain()
        b(f's_call_b64 {sr(sRET,2)}, {name}')
        b.calls.append((len(b.out), name))
    def newblock(name):
        b = Block(name); b.calls = []; blocks[name] = b; return b
    def dma_unit(b, srd, soff, ldsbase, pol):
        b(f's_add_u32 m0, s{sWL}, {ldsbase}' if ldsbase else f's_mov_b32 m0, s{sWL}')
        b(f's_add_u32 s{sX}, s{soff}, 3072')
        for j in range(3):
            b(f'buffer_load_dwordx4 v{vP+j}, {sr(srd,4)}, s{soff} offen offset:{1024*j} lds{pol}')
        b(f's_add_u32 m0, s{sWL}, {ldsbase+3072}')
        for j in range(3):
            b(f'buffer_load_dwordx4 v{vP+j}, {sr(srd,4)}, s{sX} offen offset:{1024*j} lds{pol}')
    def load_q(b, dst, step):
        if step == 0: so = sW0
        else:
            b(f's_mul_i32 s{sX+1}, s{sSTEP}, {4*step}')
            b(f's_add_u32 s{sX+1}, s{sX+1}, s{sW0}')
            so = sX + 1
        for t in range(6):
            b(f'buffer_load_dwordx4 {vr(dst+4*t,4)}, v{vQO}, {sr(SQ,4)}, s{so} offen offset:{64*t}{ntq}')

    p = newblock('pro')
    p(f's_cmp_ge_u32 s2, 256')
    p(f's_cbranch_scc1 L_end')
    p(f's_load_dwordx2 {sr(SQ,2)}, s[0:1], 0')
    p(f's_load_dwordx2 {sr(SK,2)}, s[0:1], 8')
    p(f's_load_dwordx2 {sr(SV,2)}, s[0:1], 16')
    p(f's_load_dwordx2 {sr(SO,2)}, s[0:1], 40')
    p(f's_load_dwordx2 {sr(SDBG,2)}, s[0:1], 48')
    p(f's_load_dwordx2 {sr(SWS,2)}, s[0:1], 56')
    p(f'''
    v_lshrrev_b32 v{vT}, 6, v0
    v_and_b32 v0, 63, v0
    v_readfirstlane_b32 s{sW}, v{vT}
    s_and_b32 s{sT0}, s2, 7
    s_lshr_b32 s{sT1}, s2, 3
    s_lshr_b32 s{sT2}, s{sT1}, 3
    s_lshl_b32 s{sHEAD}, s{sT0}, 2
    s_add_u32 s{sHEAD}, s{sHEAD}, s{sT2}
    s_and_b32 s{sCH}, s{sT1}, 7
    s_and_b32 s{sDIR}, s{sCH}, 1
    s_mul_i32 s{sHB}, s{sHEAD}, {HEADB}
    s_mul_i32 s{sT0}, s{sCH}, {16*UNIT}
    s_add_u32 s{sT0}, s{sT0}, s{sHB}
    s_movk_i32 s{sSTEP}, {UNIT}
    s_cmp_eq_u32 s{sDIR}, 1
    s_cselect_b32 s{sSTEP}, {-UNIT}, s{sSTEP}
    s_cselect_b32 s{sT1}, {15*UNIT}, 0
    s_add_u32 s{sT0}, s{sT0}, s{sT1}
    s_mul_i32 s{sT1}, s{sW}, s{sSTEP}
    s_add_u32 s{sW0}, s{sT0}, s{sT1}
    s_mul_i32 s{sWL}, s{sW}, {UNIT}
    v_lshlrev_b32 v{vT+1}, 4, v0
    ''')
    for j in range(3):
        if j: p(f'v_add_u32 v{vT+2}, {64*j}, v0')
        p(f'v_mul_u32_u24 v{vT+2}, 2731, {"v0" if j==0 else vr(vT+2)}')
        p(f'v_lshrrev_b32 v{vT+2}, 12, v{vT+2}')
        p(f'v_and_b32 v{vT+2}, 0x60, v{vT+2}')
        p(f'v_xor_b32 v{vP+j}, v{vT+2}, v{vT+1}')
    p(f'''
    v_and_b32 v{vT+3}, 15, v0
    v_lshrrev_b32 v{vT+4}, 4, v0
    v_mul_u32_u24 v{vT+5}, 384, v{vT+3}
    v_lshl_add_u32 v{vQO}, v{vT+4}, 4, v{vT+5}
    ''')
    for srd, size in ((SQ, TENSB), (SK, TENSB), (SV, TENSB), (SO, TENSB), (SDBG, 256), (SWS, 0x10000000 if cfg.stamps else 256*2048)):
        p(f's_mov_b32 s{srd+2}, {size}')
        p(f's_mov_b32 s{srd+3}, 0x20000')
    p(f's_mov_b32 s{sC}, {CBITS:#x}')
    if cfg.stamps: p(f'v_mov_b32 v{vST}, 0')
    p(f's_cmp_eq_u32 s{sW}, 4')
    p(f's_cbranch_scc1 L_gload')

    vm = VM()
    ll = newblock('lload')
    b = ll
    b(f'''
    s_lshl_b32 s{sT0}, s{sSTEP}, 1
    s_lshl_b32 s{sT1}, s{sSTEP}, 2
    s_sub_u32 s{sOFF}, s{sW0}, s{sT0}
    s_add_u32 s{sOFF+1}, s{sW0}, s{sT0}
    s_add_u32 s{sOFF+2}, s{sOFF+1}, s{sT1}
    s_add_u32 s{sOFF+3}, s{sOFF+2}, s{sT1}
    s_add_u32 s{sOFF+4}, s{sOFF+3}, s{sT1}
    s_add_u32 s{sT2}, s{sCH}, 1
    s_and_b32 s{sT2}, s{sT2}, 7
    s_max_u32 s{sT2}, s{sT2}, s{sW}
    s_cmp_lt_u32 s{sT2}, 2
    s_cselect_b32 s{sOFF}, s{sW0}, s{sOFF}
    v_bfe_u32 v{vT+2}, v0, 2, 1
    v_mul_u32_u24 v{vT+2}, 384, v{vT+2}
    v_lshl_add_u32 v{vT+2}, v{vT+4}, 4, v{vT+2}
    s_waitcnt lgkmcnt(0)
    ''')
    stamp(b, 0)
    load_q(b, vQ, 0); vm.add('Q0', 6)
    dma_unit(b, SK, sOFF, 0, ntl); vm.add('g0', 6)
    dma_unit(b, SK, sOFF+1, 4*UNIT, ntl); vm.add('g1', 6)
    for t in range(6):
        b(f'buffer_load_dwordx4 {vr(vKG+4*t,4)}, v{vT+2}, {sr(SK,4)}, s{sHB} offen offset:{64*t}')
    vm.add('Kg', 6)
    dma_unit(b, SV, sOFF, VOFF, ntl); vm.add('g2', 6)
    dma_unit(b, SV, sOFF+1, VOFF+4*UNIT, ntl); vm.add('g3', 6)
    load_q(b, vQS, 1); vm.add('Q1', 6)
    dma_unit(b, SK, sOFF+2, 8*UNIT, ntl); vm.add('g4', 6)
    dma_unit(b, SV, sOFF+2, VOFF+8*UNIT, ntl); vm.add('g5', 6)
    b('s_branch L_join')

    gl = newblock('gload')
    b = gl
    b('L_gload:')
    if cfg.pf:
        b(f's_getpc_b64 {sr(sX+1,2)}')
        b('L_pc:')
        b(f's_add_u32 s{sX+1}, s{sX+1}, L_join-L_pc')
        b(f's_addc_u32 s{sX+2}, s{sX+2}, 0')
        b(f'v_mov_b32 v{vF+1}, s{sX+2}')
        b(f'v_add_co_u32 v{vF}, vcc, s{sX+1}, v{vT+1}')
        b(f'v_addc_co_u32 v{vF+1}, vcc, 0, v{vF+1}, vcc')
        for i in range(cfg.pf):
            if i and i % 4 == 0:
                b(f'v_add_co_u32 v{vF}, vcc, 4096, v{vF}')
                b(f'v_addc_co_u32 v{vF+1}, vcc, 0, v{vF+1}, vcc')
            b(f'global_load_dwordx4 {vr(vF+4,4)}, {vr(vF,2)}, off offset:{1024*(i%4)}')
    b(f'''
    v_and_b32 v{vT+2}, 1, v0
    v_mul_u32_u24 v{vT+2}, 384, v{vT+2}
    v_lshl_add_u32 v{vT+2}, v{vT+4}, 4, v{vT+2}
    s_mov_b32 m0, {VG}
    s_waitcnt lgkmcnt(0)
    ''')
    stamp(b, 0)
    for t in range(6):
        b(f'buffer_load_dwordx4 {vr(vQ+4*t,4)}, v{vT+2}, {sr(SQ,4)}, s{sHB} offen offset:{64*t}')
    b(f'buffer_load_dwordx4 v{vT+1}, {sr(SV,4)}, s{sHB} offen lds')

    jn = newblock('join')
    b = jn
    b('L_join:')
    b(f'''
    v_lshlrev_b32 v{vT+2}, 4, v{vT+3}
    v_and_b32 v{vT+2}, 0x60, v{vT+2}
    v_xor_b32 v{vLK}, v{vT+2}, v{vQO}
    v_xor_b32 v{vLK+1}, 64, v{vLK}
    v_lshrrev_b32 v{vT+2}, 2, v0
    v_mul_u32_u24 v{vLV}, 384, v{vT+2}
    v_lshlrev_b32 v{vT+2}, 4, v{vT+2}
    v_and_b32 v{vT+2}, 0x60, v{vT+2}
    v_and_b32 v{vT+5}, 3, v0
    v_lshlrev_b32 v{vT+5}, 3, v{vT+5}
    v_add3_u32 v{vLV}, v{vLV}, v{vT+2}, v{vT+5}
    v_add_u32 v{vLV}, {VOFF}, v{vLV}
    v_xor_b32 v{vLV+1}, 32, v{vLV}
    v_xor_b32 v{vLV+2}, 64, v{vLV}
    v_xor_b32 v{vLV+3}, 0x60, v{vLV}
    v_mov_b32 v{vONE}, 0x3f803f80
    v_mov_b32 v{vONE+1}, 0x3f803f80
    v_mov_b32 v{vONE+2}, 0x3f803f80
    v_mov_b32 v{vONE+3}, 0x3f803f80
    s_cmp_eq_u32 s{sW}, 4
    s_cbranch_scc1 L_gmain
    ''')

    lm = newblock('lmain')
    b = lm
    b(f'''
    v_and_b32 v{vT+2}, 1, v{vT+4}
    v_mul_u32_u24 v{vT+2}, 384, v{vT+2}
    v_add_u32 v{vT+2}, {VG}, v{vT+2}
    v_add_u32 v{vVG}, v{vT+2}, v{vT+5}
    v_lshrrev_b32 v{vT+2}, 3, v0
    v_and_b32 v{vT+5}, 7, v0
    v_mul_u32_u24 v{vOS}, 384, v{vT+2}
    v_lshl_add_u32 v{vOS}, v{vT+5}, 4, v{vOS}
    s_lshl_b32 s{sT0}, s{sW}, 11
    s_add_u32 s{sT0}, s{sT0}, {STG}
    v_xor_b32 v{vT+5}, v{vT+5}, v{vT+4}
    v_lshlrev_b32 v{vT+5}, 4, v{vT+5}
    v_lshl_add_u32 v{vT+5}, v{vT+2}, 7, v{vT+5}
    v_add_u32 v{vSR}, s{sT0}, v{vT+5}
    v_xor_b32 v{vSR+1}, 64, v{vSR}
    v_and_b32 v{vT+2}, 14, v{vT+3}
    v_xor_b32 v{vT+2}, v{vT+2}, v{vT+4}
    v_lshlrev_b32 v{vT+2}, 3, v{vT+2}
    v_lshl_add_u32 v{vT+2}, v{vT+3}, 7, v{vT+2}
    v_add_u32 v{vSW}, s{sT0}, v{vT+2}
    v_xor_b32 v{vSW+1}, 32, v{vSW}
    v_xor_b32 v{vSW+2}, 64, v{vSW}
    v_xor_b32 v{vSW+3}, 0x60, v{vSW}
    s_or_b32 s{sT0}, s{sCH}, s{sW}
    s_cmp_eq_u32 s{sT0}, 0
    s_cselect_b32 s{sX+1}, 0xffff, 0
    s_mov_b32 s{sX+2}, 0
    v_bfrev_b32 v{vT+2}, 1
    v_cndmask_b32 v{vOS0}, v{vOS}, v{vT+2}, {sr(sX+1,2)}
    s_mov_b32 s{sMG}, -1
    s_mov_b32 s{sMG+1}, 0
    v_lshlrev_b32 v{vT+4}, 2, v{vT+4}
    v_sub_u32 v{vT+2}, v{vT+4}, v{vT+3}
    ''')
    for r in range(4):
        b(f'v_cmp_ge_i32 {sr(sM1+2*r,2)}, v{vT+2}, {-r}')
        b(f'v_cmp_le_i32 {sr(sM2+2*r,2)}, v{vT+2}, {-r}')
    b(f's_cmp_eq_u32 s{sDIR}, 1')
    for r in range(4):
        b(f's_cselect_b64 {sr(sTRI+2*r,2)}, {sr(sM2+2*r,2)}, {sr(sM1+2*r,2)}')
        b(f's_cselect_b64 {sr(sML+2*r,2)}, {sr(sM1+2*r,2)}, {sr(sM2+2*r,2)}')
    b(f'''
    s_cselect_b32 s{sT0}, -16, 16
    s_cselect_b32 s{sT1}, 240, 0
    s_lshl_b32 s{sT2}, s{sCH}, 8
    s_add_u32 s{sT1}, s{sT1}, s{sT2}
    s_sub_u32 s{sT2}, s{sW}, 2
    s_mul_i32 s{sT2}, s{sT2}, s{sT0}
    s_add_u32 s{sT1}, s{sT1}, s{sT2}
    s_sub_u32 s{sT1}, s{sT1}, 2
    s_movk_i32 s{sT3}, 2046
    ''')
    for i, dst in enumerate((sMF, sM1, sM2)):
        b(f'v_add_u32 v{vT+2}, s{sT1}, v{vT+4}')
        if i < 2: b(f's_add_u32 s{sT1}, s{sT1}, s{sT0}')
        for r in range(4):
            if r: b(f'v_add_u32 v{vT+2}, 1, v{vT+2}')
            b(f'v_cmp_gt_u32 {sr(dst+2*r,2)}, s{sT3}, v{vT+2}')
    for r in range(4):
        b(f's_and_b64 {sr(sMF+2*r,2)}, {sr(sMF+2*r,2)}, {sr(sTRI+2*r,2)}')
    b(f's_mov_b32 s{sRING}, s{sWL}')
    b(f's_mov_b32 s{sOO}, s{sW0}')
    call(b, 'F_addr')
    stamp(b, 1)
    vm.wait(b, ['Q0', 'g0', 'g1', 'Kg']); b('s_barrier')
    stamp(b, 2)
    call(b, 'F_qk')
    vm.wait(b, ['g2', 'g3']); b('s_barrier')
    stamp(b, 3)
    dma_unit(b, SK, sOFF+3, 0, ntl); vm.add('A', 6)
    call(b, 'F_pv'); call(b, 'F_epi'); vm.add('O0', 6)
    stamp(b, 4)
    for r in range(4):
        b(f's_mov_b64 {sr(sMF+2*r,2)}, {sr(sTRI+2*r,2)}')
        b(f's_mov_b64 {sr(sM1+2*r,2)}, -1')
        b(f's_mov_b64 {sr(sM2+2*r,2)}, -1')
    b(f'v_mov_b32 v{vOS0}, v{vOS}')
    def advance():
        b(f's_add_u32 s{sRING}, s{sRING}, {4*UNIT}')
        b(f's_lshl_b32 s{sT0}, s{sSTEP}, 2')
        b(f's_add_u32 s{sOO}, s{sOO}, s{sT0}')
        call(b, 'F_addr')
    def copyq():
        for i in range(24): b(f'v_mov_b32 v{vQ+i}, v{vQS+i}')
    advance()
    vm.wait(b, ['Q1', 'g4']); b('s_barrier')
    stamp(b, 5)
    dma_unit(b, SV, sOFF+3, VOFF, ntl); vm.add('B', 6)
    copyq()
    call(b, 'F_qk')
    vm.wait(b, ['g5']); b('s_barrier')
    stamp(b, 6)
    dma_unit(b, SK, sOFF+4, 4*UNIT, ntl); vm.add('C', 6)
    if cfg.order == 1:
        load_q(b, vQ, 2); vm.add('Q2', 6)
    call(b, 'F_pv')
    b('s_barrier')
    dma_unit(b, SV, sOFF+4, VOFF+4*UNIT, ntl); vm.add('D', 6)
    if cfg.order == 2:
        load_q(b, vQ, 2); vm.add('Q2', 6)
    call(b, 'F_epi'); vm.add('O1', 6)
    if cfg.order == 0:
        load_q(b, vQ, 2); vm.add('Q2', 6)
    load_q(b, vQS, 3); vm.add('Q3', 6)
    stamp(b, 7)
    advance()
    vm.wait(b, ['A', 'B']); b('s_barrier')
    stamp(b, 8)
    if cfg.order == 1:
        vm.wait(b, ['Q2'])
        call(b, 'F_qk')
        vm.wait(b, ['C', 'D']); b('s_barrier')
        stamp(b, 9)
        stamp(b, 10)
        call(b, 'F_pv'); call(b, 'F_epi'); vm.add('O2', 6)
    else:
        vm.wait(b, ['C', 'D']); b('s_barrier')
        stamp(b, 9)
        vm.wait(b, ['Q2'])
        stamp(b, 10)
        call(b, 'F_qk'); call(b, 'F_pv'); call(b, 'F_epi'); vm.add('O2', 6)
    stamp(b, 11)
    advance()
    vm.wait(b, ['Q3'])
    stamp(b, 12)
    copyq()
    call(b, 'F_qk'); call(b, 'F_pv'); call(b, 'F_epi'); vm.add('O3', 6)
    stamp(b, 13)
    def store_stamps(b, off):
        if cfg.stamps:
            b('s_waitcnt vmcnt(0)')
            stamp(b, 14)
            b(f's_lshl_b32 s{sT0}, s2, 7')
            b(f's_add_u32 s{sT0}, s{sT0}, {0x8000000+off}')
            b(f'v_lshlrev_b32 v{vT}, 2, v0')
            b(f's_mov_b64 exec, 0xffff')
            b(f'buffer_store_dword v{vST}, v{vT}, {sr(SWS,4)}, s{sT0} offen')
    if cfg.stamps:
        b(f's_cmp_eq_u32 s{sW}, 0')
        b('s_cbranch_scc0 L_end')
        store_stamps(b, 0)
    b('L_end:')
    b('s_endpgm')

    b = newblock('F_addr'); b('F_addr:')
    for i in range(5):
        b(f's_add_u32 s{sT0}, s{sRING}, {i*UNIT}')
        b(f's_sub_u32 s{sT1}, s{sT0}, {VOFF}')
        b(f's_cselect_b32 s{sT0}, s{sT0}, s{sT1}')
        for j in range(2): b(f'v_add_u32 v{vAK+2*i+j}, s{sT0}, v{vLK+j}')
        for j in range(4): b(f'v_add_u32 v{vAV+4*i+j}, s{sT0}, v{vLV+j}')
    b(f's_setpc_b64 {sr(sRET,2)}')

    b = newblock('F_qk'); b('F_qk:')
    kbuf = lambda blk, t: vr(vO + 24*(blk % 2) + 4*t, 4)
    kread = lambda blk, t: b(f'ds_read_b128 {kbuf(blk,t)}, v{vAK+2*blk+(t&1)} offset:{128*(t>>1)}')
    S = lambda blk, r=None: vr(vS+4*blk, 4) if r is None else f'v{vS+4*blk+r}'
    for blk in range(2):
        for t in range(6): kread(blk, t)
    for t in range(6):
        b(f'v_mfma_f32_16x16x32_bf16 {S(5)}, {vr(vKG+4*t,4)}, {vr(vQ+4*t,4)}, {S(5) if t else 0}')
    for blk in range(5):
        for t in range(6):
            b(f'v_mfma_f32_16x16x32_bf16 {S(blk)}, {kbuf(blk,t)}, {vr(vQ+4*t,4)}, {S(blk) if t else 0}')
            if blk + 2 <= 4: kread(blk+2, t)
    NEG = vT + 3
    b(f'v_mov_b32 v{NEG}, 0xff800000')
    b(f'v_cndmask_b32 {S(5,0)}, v{NEG}, {S(5,0)}, {sr(sMG,2)}')
    for blk, m in ((0, sMF), (1, sM1), (2, sM2)):
        for r in range(4): b(f'v_cndmask_b32 {S(blk,r)}, v{NEG}, {S(blk,r)}, {sr(m+2*r,2)}')
    b(f'v_max3_f32 v{vT}, {S(5,0)}, {S(0,0)}, {S(0,1)}')
    b(f'v_max3_f32 v{vT}, v{vT}, {S(0,2)}, {S(0,3)}')
    for blk in range(1, 4):
        b(f'v_max3_f32 v{vT}, v{vT}, {S(blk,0)}, {S(blk,1)}')
        b(f'v_max3_f32 v{vT}, v{vT}, {S(blk,2)}, {S(blk,3)}')
    for r in range(4): b(f'v_cndmask_b32 {S(4,r)}, v{NEG}, {S(4,r)}, {sr(sML+2*r,2)}')
    b(f'v_max3_f32 v{vT}, v{vT}, {S(4,0)}, {S(4,1)}')
    b(f'v_max3_f32 v{vT}, v{vT}, {S(4,2)}, {S(4,3)}')
    def xmax(b, x, y):
        for sw in ('v_permlane32_swap_b32', 'v_permlane16_swap_b32'):
            b(f'v_mov_b32 v{y}, v{x}')
            b(f'{sw} v{x}, v{y}')
            b(f'v_max_f32 v{x}, v{x}, v{y}')
    xmax(b, vT, vT+1)
    b(f'v_mul_f32 v{vT+1}, s{sC}, v{vT}')
    vals = [(blk, r) for blk in range(5) for r in range(4)] + [(5, 0)]
    for blk, r in vals: b(f'v_fma_f32 {S(blk,r)}, {S(blk,r)}, s{sC}, -v{vT+1}')
    for blk, r in vals: b(f'v_exp_f32 {S(blk,r)}, {S(blk,r)}')
    for blk in range(5):
        for h in range(2):
            b(f'v_cvt_pk_bf16_f32 v{vPP+2*blk+h}, {S(blk,2*h)}, {S(blk,2*h+1)}')
    b(f'v_cvt_pk_bf16_f32 v{vPP+10}, {S(5,0)}, 0')
    b(f'v_mov_b32 v{vPP+11}, 0')
    b.drain()
    b(f's_setpc_b64 {sr(sRET,2)}')

    b = newblock('F_pv'); b('F_pv:')
    def vread(n):
        ks, db = divmod(n, 12)
        x = vF + 4*(n % 8)
        b(f'ds_read_b64_tr_b16 {vr(x,2)}, v{vAV+4*(2*ks)+(db&3)} offset:{128*(db>>2)}')
        if ks < 2: b(f'ds_read_b64_tr_b16 {vr(x+2,2)}, v{vAV+4*(2*ks+1)+(db&3)} offset:{128*(db>>2)}')
        else:      b(f'ds_read_b64_tr_b16 {vr(x+2,2)}, v{vVG} offset:{32*db}')
    for n in range(7): vread(n)
    for ks in range(3):
        b(f'v_mfma_f32_16x16x32_bf16 {vr(vL,4)}, {vr(vONE,4)}, {vr(vPP+4*ks,4)}, {vr(vL,4) if ks else 0}')
    for n in range(36):
        ks, db = divmod(n, 12)
        b(f'v_mfma_f32_16x16x32_bf16 {vr(vO+4*db,4)}, {vr(vF+4*(n%8),4)}, {vr(vPP+4*ks,4)}, {vr(vO+4*db,4) if ks else 0}')
        if n + 7 < 36: vread(n + 7)
    b.drain()
    b(f's_setpc_b64 {sr(sRET,2)}')

    b = newblock('F_epi'); b('F_epi:')
    b(f'v_rcp_f32 v{vT}, v{vL}')
    def ostore(pz):
        b(f'buffer_store_dwordx4 {vr(vF+8*pz,4)}, v{vOS0}, {sr(SO,4)}, s{sOO} offen offset:{128*pz}{nts}')
        b(f'buffer_store_dwordx4 {vr(vF+8*pz+4,4)}, v{vOS}, {sr(SO,4)}, s{sOO} offen offset:{3072+128*pz}{nts}')
    for pz in range(3):
        for j in range(4):
            db = 4*pz + j
            for h in range(2):
                b(f'v_pk_mul_f32 {vr(vO+4*db+2*h,2)}, {vr(vO+4*db+2*h,2)}, {vr(vT,2)} op_sel_hi:[1,0]')
            for h in range(2):
                b(f'v_cvt_pk_bf16_f32 v{vS+2*db+h}, v{vO+4*db+2*h}, v{vO+4*db+2*h+1}')
            b(f'ds_write_b64 v{vSW+j}, {vr(vS+2*db,2)}')
        if pz: ostore(pz - 1)
        b(f'ds_read_b128 {vr(vF+8*pz,4)}, v{vSR}')
        b(f'ds_read_b128 {vr(vF+8*pz+4,4)}, v{vSR+1} offset:1024')
    ostore(2)
    b.drain()
    b(f's_setpc_b64 {sr(sRET,2)}')

    gKF, gS, gP = 108, 156, 164
    gM = vT
    b = newblock('gmain'); b('L_gmain:')
    for i in range(52): b(f'v_mov_b32 v{vO+i}, 0')
    b(f'v_mov_b32 v{gM}, 0xff800000')
    def gaddr(j):
        base = ((2*j + 2) % 12) * UNIT
        for x in range(2): b(f'v_add_u32 v{vAK+x}, {base}, v{vLK+x}')
        for x in range(4): b(f'v_add_u32 v{vAV+x}, {base}, v{vLV+x}')
    def pair(j):
        gaddr(j); call(b, 'G_qk'); call(b, 'G_pv')
    gaddr(0)
    stamp(b, 1)
    b('s_waitcnt vmcnt(0)'); b('s_barrier')
    stamp(b, 2)
    call(b, 'G_qk')
    b('s_barrier')
    stamp(b, 3)
    call(b, 'G_pv'); pair(1); pair(2)
    stamp(b, 4)
    b('s_barrier')
    b('s_barrier')
    b('s_barrier')
    pair(3); pair(4)
    stamp(b, 7)
    b('s_barrier')
    stamp(b, 8)
    pair(5); pair(6)
    gaddr(7)
    b('s_barrier')
    stamp(b, 9)
    call(b, 'G_qk'); call(b, 'G_pv')
    b(f'''
    s_lshl_b32 s{sT0}, s{sHEAD}, 14
    s_lshl_b32 s{sT1}, s{sCH}, 11
    s_add_u32 s{sT1}, s{sT1}, s{sT0}
    v_and_b32 v{vT+2}, 1, v0
    v_lshlrev_b32 v{vT+2}, 10, v{vT+2}
    v_and_b32 v{vT+3}, 0x30, v0
    v_add_u32 v{vT+3}, v{vT+3}, v{vT+2}
    s_mov_b32 exec_lo, 0x00030003
    s_mov_b32 exec_hi, 0x00030003
    ''')
    for db in range(12):
        b(f'buffer_store_dwordx4 {vr(vO+4*db,4)}, v{vT+3}, {sr(SWS,4)}, s{sT1} offen offset:{64*db} sc1')
    b(f'v_mov_b32 v{vT+1}, v{vL}')
    b(f's_mov_b64 exec, 3')
    b(f'buffer_store_dwordx2 {vr(vT,2)}, v{vT+2}, {sr(SWS,4)}, s{sT1} offen offset:768 sc1')
    b(f's_mov_b64 exec, -1')
    stamp(b, 10)
    b(f'''
    v_mov_b32 v{vT+4}, 1
    s_lshl_b32 s{sT1}, s{sHEAD}, 2
    v_mov_b32 v{vT+5}, s{sT1}
    s_mov_b64 exec, 1
    s_waitcnt vmcnt(0)
    buffer_atomic_add v{vT+4}, v{vT+5}, {sr(SDBG,4)}, 0 offen sc0
    s_mov_b64 exec, -1
    v_lshrrev_b32 v{vT+2}, 5, v0
    v_and_b32 v{vT+3}, 31, v0
    v_lshlrev_b32 v{vT}, 10, v{vT+2}
    v_lshl_add_u32 v{vT+1}, v{vT+3}, 5, v{vT}
    v_mul_u32_u24 v{vT+2}, 384, v{vT+2}
    v_lshl_add_u32 v{vT+2}, v{vT+3}, 4, v{vT+2}
    ''')
    stamp(b, 11)
    b(f'''
    s_waitcnt vmcnt(0)
    v_readfirstlane_b32 s{sT1}, v{vT+4}
    ''')
    stamp(b, 12)
    b(f's_cmp_eq_u32 s{sT1}, 7')
    b('s_cbranch_scc0 ' + ('L_gdone' if cfg.stamps else 'L_end2'))
    b('s_mov_b32 exec_lo, 0x00ffffff')
    b('s_mov_b32 exec_hi, 0x00ffffff')
    cD, cM = 100, 164
    for c in range(8):
        b(f'buffer_load_dwordx2 {vr(cM+2*c,2)}, v{vT}, {sr(SWS,4)}, s{sT0} offen offset:768 sc1')
        b(f'buffer_load_dwordx4 {vr(cD+8*c,4)}, v{vT+1}, {sr(SWS,4)}, s{sT0} offen sc1')
        b(f'buffer_load_dwordx4 {vr(cD+8*c+4,4)}, v{vT+1}, {sr(SWS,4)}, s{sT0} offen offset:16 sc1')
        if c < 7: b(f's_add_u32 s{sT0}, s{sT0}, 2048')
    b('s_waitcnt vmcnt(0)')
    b(f'v_max3_f32 v{vT+3}, v{cM}, v{cM+2}, v{cM+4}')
    b(f'v_max3_f32 v{vT+3}, v{vT+3}, v{cM+6}, v{cM+8}')
    b(f'v_max3_f32 v{vT+3}, v{vT+3}, v{cM+10}, v{cM+12}')
    b(f'v_max_f32 v{vT+3}, v{vT+3}, v{cM+14}')
    for c in range(8): b(f'v_sub_f32 v{cM+2*c}, v{cM+2*c}, v{vT+3}')
    for c in range(8): b(f'v_mul_f32 v{cM+2*c}, s{sC}, v{cM+2*c}')
    for c in range(8): b(f'v_exp_f32 v{cM+2*c}, v{cM+2*c}')
    b(f'v_mul_f32 v{vT+4}, v{cM}, v{cM+1}')
    for c in range(1, 8): b(f'v_fmac_f32 v{vT+4}, v{cM+2*c}, v{cM+2*c+1}')
    b(f'v_rcp_f32 v{vT+4}, v{vT+4}')
    for i in range(8): b(f'v_mul_f32 v{cD+i}, v{cM}, v{cD+i}')
    for c in range(1, 8):
        for i in range(8): b(f'v_fmac_f32 v{cD+i}, v{cM+2*c}, v{cD+8*c+i}')
    for i in range(8): b(f'v_mul_f32 v{cD+i}, v{vT+4}, v{cD+i}')
    for i in range(4): b(f'v_cvt_pk_bf16_f32 v{vF+i}, v{cD+2*i}, v{cD+2*i+1}')
    b(f'buffer_store_dwordx4 {vr(vF,4)}, v{vT+2}, {sr(SO,4)}, s{sHB} offen')
    if cfg.stamps:
        b('s_mov_b64 exec, -1')
        stamp(b, 13)
        b('L_gdone:')
        store_stamps(b, 64)
    b('L_end2:')
    b('s_endpgm')

    b = newblock('G_qk'); b('G_qk:')
    for u in range(2):
        for t in range(6):
            b(f'ds_read_b128 {vr(gKF+24*u+4*t,4)}, v{vAK+(t&1)} offset:{UNIT*u+128*(t>>1)}')
    for u in range(2):
        for t in range(6):
            b(f'v_mfma_f32_16x16x32_bf16 {vr(gS+4*u,4)}, {vr(gKF+24*u+4*t,4)}, {vr(vQ+4*t,4)}, {vr(gS+4*u,4) if t else 0}')
    b(f'v_max3_f32 v{vT+2}, v{gM}, v{gS}, v{gS+1}')
    b(f'v_max3_f32 v{vT+2}, v{vT+2}, v{gS+2}, v{gS+3}')
    b(f'v_max3_f32 v{vT+2}, v{vT+2}, v{gS+4}, v{gS+5}')
    b(f'v_max3_f32 v{vT+2}, v{vT+2}, v{gS+6}, v{gS+7}')
    xmax(b, vT+2, vT+3)
    b(f'v_sub_f32 v{vT+4}, v{gM}, v{vT+2}')
    b(f'v_mul_f32 v{vT+3}, s{sC}, v{vT+2}')
    b(f'v_mul_f32 v{vT+4}, s{sC}, v{vT+4}')
    b(f'v_mov_b32 v{gM}, v{vT+2}')
    b(f'v_exp_f32 v{vT+4}, v{vT+4}')
    for i in range(8): b(f'v_fma_f32 v{gS+i}, v{gS+i}, s{sC}, -v{vT+3}')
    for i in range(8): b(f'v_exp_f32 v{gS+i}, v{gS+i}')
    for i in range(26): b(f'v_pk_mul_f32 {vr(vO+2*i,2)}, {vr(vO+2*i,2)}, {vr(vT+4,2)} op_sel_hi:[1,0]')
    for i in range(4): b(f'v_cvt_pk_bf16_f32 v{gP+i}, v{gS+2*i}, v{gS+2*i+1}')
    b.drain()
    b(f's_setpc_b64 {sr(sRET,2)}')

    b = newblock('G_pv'); b('G_pv:')
    def gvread(db):
        x = vF + 4*(db % 8)
        for u in range(2):
            b(f'ds_read_b64_tr_b16 {vr(x+2*u,2)}, v{vAV+(db&3)} offset:{UNIT*u+128*(db>>2)}')
    for db in range(7): gvread(db)
    b(f'v_mfma_f32_16x16x32_bf16 {vr(vL,4)}, {vr(vONE,4)}, {vr(gP,4)}, {vr(vL,4)}')
    for db in range(12):
        b(f'v_mfma_f32_16x16x32_bf16 {vr(vO+4*db,4)}, {vr(vF+4*(db%8),4)}, {vr(gP,4)}, {vr(vO+4*db,4)}')
        if db + 7 < 12: gvread(db + 7)
    b.drain()
    b('s_nop 7')
    b(f's_setpc_b64 {sr(sRET,2)}')

    def expand(name):
        blk = blocks[name]; out = []; pos = 0
        for at, callee in blk.calls:
            out += blk.out[pos:at] + expand(callee); pos = at
        return out + blk.out[pos:]
    for path in (['pro', 'lload', 'join', 'lmain'], ['pro', 'gload', 'join', 'gmain']):
        tr = sum((expand(n) for n in path), [])
        errs = check_trace(tr)
        nb = sum(1 for i in tr if i.op == 's_barrier')
        print(f'; path {path[1]}: {len(tr)} instrs, {nb} barriers, {len(errs)} hazard errors', file=sys.stderr)
        for e in errs: print('HAZARD', e, file=sys.stderr)
        assert not errs

    order = ['pro', 'lload', 'gload', 'join', 'lmain', 'F_addr', 'F_qk', 'F_pv', 'F_epi', 'G_qk', 'G_pv', 'gmain']
    body = '\n'.join(blocks[n].text() for n in order)
    hdr = f'''; Windowed (|i-j| <= 32) + 2 global tokens attention, B=1 H=32 S=2048 D=192, bf16.
; @launch grid=(256,1,1) block=(320,1,1) lds={LDS_TOTAL}
.amdgcn_target "amdgcn-amd-amdhsa--gfx950"
.text
.globl {NAME}
.p2align 8
.type {NAME},@function
{NAME}:
'''
    tail = f'''
.fill 256, 4, 0xbf800000
.section .rodata,"a"
.p2align 6
.amdhsa_kernel {NAME}
  .amdhsa_next_free_vgpr 256
  .amdhsa_next_free_sgpr 102
  .amdhsa_accum_offset 256
  .amdhsa_group_segment_fixed_size 0
  .amdhsa_kernarg_size 64
  .amdhsa_user_sgpr_count 2
  .amdhsa_user_sgpr_kernarg_segment_ptr 1
  .amdhsa_system_sgpr_workgroup_id_x 1
  .amdhsa_float_denorm_mode_32 3
.end_amdhsa_kernel
'''
    return hdr + body + tail

if __name__ == '__main__':
    ap = argparse.ArgumentParser()
    ap.add_argument('--ntl', default='', help='cache policy suffix for K/V DMA loads')
    ap.add_argument('--ntq', default='')
    ap.add_argument('--nts', default='')
    ap.add_argument('--pf', type=int, default=0, help='KB of code to prefetch into L2')
    ap.add_argument('--order', type=int, default=0)
    ap.add_argument('--stamps', type=int, default=0)
    ap.add_argument('-o', default='-')
    a = ap.parse_args()
    for k in ('ntl', 'ntq', 'nts'):
        v = getattr(a, k)
        setattr(a, k, (' ' + v.replace('+', ' ')) if v else '')
    s = gen(a)
    if a.o == '-': print(s)
    else: open(a.o, 'w').write(s)
```

```python
import sys, argparse
from asmlib import *

NAME = 'standalone__global_local_windowed_global_tokens__prompt_kernel'
UNIT = 6144
VOFF = 12 * UNIT
STG = 24 * UNIT
VG = STG + 8192
LDS_TOTAL = VG + 1024
HEADB = 786432
TENSB = 25165824
CBITS = 0x3dd53b95

def vr(a, n=1): return f'v{a}' if n == 1 else f'v[{a}:{a+n-1}]'
def sr(a, n=1): return f's{a}' if n == 1 else f's[{a}:{a+n-1}]'

SQ, SK, SV, SO, SWS, SDBG = 4, 8, 12, 16, 20, 24
sW, sHEAD, sCH, sDIR, sW0, sSTEP, sHB = 28, 29, 30, 31, 32, 33, 34
sT0, sT1, sT2, sT3, sT4 = 35, 36, 37, 38, 39
sRET = 40
sC = 42
sOO = 43
sOFF = 44
sWL = 49
sMF, sML, sM1, sM2, sTRI, sMG = 50, 58, 66, 74, 82, 90
sRING = 92
sX = 93
sSTAMP = 96
sROLE = 98
sA, sB, sFIX = 44, 45, 46

vP = 1
vQO = 4
vOS, vOS0 = 5, 6
vSW = 7
vSR = 11
vLK = 13
vLV = 15
vVG = 19
vAK = 20
vAV = 30
vT = 50
vONE = 56
vKG = 60
vQ = 84
vQS = 108
vS = 132
vPP = 156
vO = 168
vL = 216
vF = 220
vST = 252

class VM:
    def __init__(self): self.q = []
    def add(self, tag, n): self.q += [tag] * n; assert len(self.q) <= 63, len(self.q)
    def wait(self, b, tags):
        idx = max([i for i, t in enumerate(self.q) if t in tags], default=-1)
        if idx < 0: return
        n = len(self.q) - 1 - idx
        self.q = self.q[idx + 1:]
        b(f's_waitcnt vmcnt({n})')

def gen(cfg):
    ntl = cfg.ntl; nts = cfg.nts; ntq = cfg.ntq
    blocks = {}
    def stamp(b, i):
        if cfg.stamps:
            b.drain()
            b(f's_memrealtime {sr(sSTAMP,2)}')
            b('s_waitcnt lgkmcnt(0)')
            b(f'v_writelane_b32 v{vST}, s{sSTAMP}, {i}')
    def call(b, name):
        b.drain()
        b(f's_call_b64 {sr(sRET,2)}, {name}')
        b.calls.append((len(b.out), name))
    def newblock(name):
        b = Block(name); b.calls = []; blocks[name] = b; return b
    def dma_unit(b, srd, soff, ldsbase, pol):
        b(f's_add_u32 m0, s{sWL}, {ldsbase}' if ldsbase else f's_mov_b32 m0, s{sWL}')
        b(f's_add_u32 s{sX}, s{soff}, 3072')
        for j in range(3):
            b(f'buffer_load_dwordx4 v{vP+j}, {sr(srd,4)}, s{soff} offen offset:{1024*j}{pol} lds')
        b(f's_add_u32 m0, s{sWL}, {ldsbase+3072}')
        for j in range(3):
            b(f'buffer_load_dwordx4 v{vP+j}, {sr(srd,4)}, s{sX} offen offset:{1024*j}{pol} lds')
    def load_q(b, dst, step):
        if step == 0: so = sW0
        else:
            b(f's_mul_i32 s{sX+1}, s{sSTEP}, {4*step}')
            b(f's_add_u32 s{sX+1}, s{sX+1}, s{sW0}')
            so = sX + 1
        for t in range(6):
            b(f'buffer_load_dwordx4 {vr(dst+4*t,4)}, v{vQO}, {sr(SQ,4)}, s{so} offen offset:{64*t}{ntq}')

    def store_stamps(b, off):
        if cfg.stamps:
            b('s_waitcnt vmcnt(0)')
            stamp(b, 14)
            b(f's_lshl_b32 s{sT0}, s2, 7')
            b(f's_add_u32 s{sT0}, s{sT0}, {0x8000000+off}')
            b(f'v_lshlrev_b32 v{vT}, 2, v0')
            b(f's_mov_b64 exec, 0xffff')
            b(f'buffer_store_dword v{vST}, v{vT}, {sr(SWS,4)}, s{sT0} offen')

    p = newblock('pro')
    p(f's_cmp_ge_u32 s2, 256')
    p(f's_cbranch_scc1 L_end')
    p(f's_load_dwordx2 {sr(SK,2)}, s[0:1], 8')
    p(f's_load_dwordx2 {sr(SV,2)}, s[0:1], 16')
    p(f's_load_dwordx2 {sr(SQ,2)}, s[0:1], 0')
    p(f's_load_dwordx2 {sr(SO,2)}, s[0:1], 40')
    p(f's_load_dwordx2 {sr(SDBG,2)}, s[0:1], 48')
    p(f's_load_dwordx2 {sr(SWS,2)}, s[0:1], 56')
    p(f"""
    v_lshrrev_b32 v{vT}, 6, v0
    v_and_b32 v0, 63, v0
    v_readfirstlane_b32 s{sROLE}, v{vT}
    s_and_b32 s{sT0}, s2, 7
    s_lshr_b32 s{sT1}, s2, 3
    s_lshr_b32 s{sT2}, s{sT1}, 3
    s_lshl_b32 s{sHEAD}, s{sT0}, 2
    s_add_u32 s{sHEAD}, s{sHEAD}, s{sT2}
    s_and_b32 s{sCH}, s{sT1}, 7
    s_and_b32 s{sDIR}, s{sCH}, 1
    s_mul_i32 s{sHB}, s{sHEAD}, {HEADB}
    s_mul_i32 s{sT0}, s{sCH}, {16*UNIT}
    s_add_u32 s{sT0}, s{sT0}, s{sHB}
    s_movk_i32 s{sSTEP}, {UNIT}
    s_cmp_eq_u32 s{sDIR}, 1
    s_cselect_b32 s{sSTEP}, {-UNIT}, s{sSTEP}
    s_cselect_b32 s{sT1}, {15*UNIT}, 0
    s_add_u32 s{sT0}, s{sT0}, s{sT1}
    s_sub_u32 s{sW}, s{sROLE}, 2
    s_mul_i32 s{sT1}, s{sW}, s{sSTEP}
    s_add_u32 s{sW0}, s{sT0}, s{sT1}
    v_lshlrev_b32 v{vT+1}, 4, v0
    """)
    for srd, size in ((SQ, TENSB), (SK, TENSB), (SV, TENSB), (SO, TENSB), (SDBG, 256), (SWS, 0x10000000 if cfg.stamps else 256*2048)):
        p(f's_mov_b32 s{srd+2}, {size}')
        p(f's_mov_b32 s{srd+3}, 0x20000')
    if cfg.stamps: p(f'v_mov_b32 v{vST}, 0')
    p(f's_cmp_eq_u32 s{sROLE}, 0')
    p(f's_cbranch_scc1 L_loader')
    p(f"""
    v_and_b32 v{vT+3}, 15, v0
    v_lshrrev_b32 v{vT+4}, 4, v0
    v_mul_u32_u24 v{vT+5}, 384, v{vT+3}
    v_lshl_add_u32 v{vQO}, v{vT+4}, 4, v{vT+5}
    s_mov_b32 s{sC}, {CBITS:#x}
    s_cmp_eq_u32 s{sROLE}, 1
    s_cbranch_scc1 L_gload
    """)

    vm = VM()
    b = newblock('lload')
    if cfg.prio_c: b(f's_setprio {cfg.prio_c}')
    b(f"""
    v_bfe_u32 v{vT+2}, v0, 2, 1
    v_mul_u32_u24 v{vT+2}, 384, v{vT+2}
    v_lshl_add_u32 v{vT+2}, v{vT+4}, 4, v{vT+2}
    s_mul_i32 s{sWL}, s{sW}, {UNIT}
    s_waitcnt lgkmcnt(0)
    """)
    stamp(b, 0)
    load_q(b, vQ, 0); vm.add('Q0', 6)
    for t in range(6):
        b(f'buffer_load_dwordx4 {vr(vKG+4*t,4)}, v{vT+2}, {sr(SK,4)}, s{sHB} offen offset:{64*t}')
    vm.add('Kg', 6)
    if cfg.q1early:
        load_q(b, vQS, 1); vm.add('Q1', 6)
    b('s_branch L_join')

    b = newblock('gload')
    b('L_gload:')
    if cfg.prio_g: b(f's_setprio {cfg.prio_g}')
    if cfg.pf:
        b(f's_getpc_b64 {sr(sX+1,2)}')
        b('L_pc:')
        b(f's_add_u32 s{sX+1}, s{sX+1}, L_join-L_pc')
        b(f's_addc_u32 s{sX+2}, s{sX+2}, 0')
        b(f'v_mov_b32 v{vF+1}, s{sX+2}')
        b(f'v_add_co_u32 v{vF}, vcc, s{sX+1}, v{vT+1}')
        b(f'v_addc_co_u32 v{vF+1}, vcc, 0, v{vF+1}, vcc')
        for i in range(cfg.pf):
            if i and i % 4 == 0:
                b(f'v_add_co_u32 v{vF}, vcc, 4096, v{vF}')
                b(f'v_addc_co_u32 v{vF+1}, vcc, 0, v{vF+1}, vcc')
            b(f'global_load_dwordx4 {vr(vF+4,4)}, {vr(vF,2)}, off offset:{1024*(i%4)}')
    b(f"""
    v_and_b32 v{vT+2}, 1, v0
    v_mul_u32_u24 v{vT+2}, 384, v{vT+2}
    v_lshl_add_u32 v{vT+2}, v{vT+4}, 4, v{vT+2}
    s_mov_b32 m0, {VG}
    s_waitcnt lgkmcnt(0)
    """)
    stamp(b, 0)
    for t in range(6):
        b(f'buffer_load_dwordx4 {vr(vQ+4*t,4)}, v{vT+2}, {sr(SQ,4)}, s{sHB} offen offset:{64*t}')
    b(f'buffer_load_dwordx4 v{vT+1}, {sr(SV,4)}, s{sHB} offen lds')

    b = newblock('join')
    b('L_join:')
    b(f"""
    v_lshlrev_b32 v{vT+2}, 4, v{vT+3}
    v_and_b32 v{vT+2}, 0x60, v{vT+2}
    v_xor_b32 v{vLK}, v{vT+2}, v{vQO}
    v_xor_b32 v{vLK+1}, 64, v{vLK}
    v_lshrrev_b32 v{vT+2}, 2, v0
    v_mul_u32_u24 v{vLV}, 384, v{vT+2}
    v_lshlrev_b32 v{vT+2}, 4, v{vT+2}
    v_and_b32 v{vT+2}, 0x60, v{vT+2}
    v_and_b32 v{vT+5}, 3, v0
    v_lshlrev_b32 v{vT+5}, 3, v{vT+5}
    v_add3_u32 v{vLV}, v{vLV}, v{vT+2}, v{vT+5}
    v_add_u32 v{vLV}, {VOFF}, v{vLV}
    v_xor_b32 v{vLV+1}, 32, v{vLV}
    v_xor_b32 v{vLV+2}, 64, v{vLV}
    v_xor_b32 v{vLV+3}, 0x60, v{vLV}
    v_mov_b32 v{vONE}, 0x3f803f80
    v_mov_b32 v{vONE+1}, 0x3f803f80
    v_mov_b32 v{vONE+2}, 0x3f803f80
    v_mov_b32 v{vONE+3}, 0x3f803f80
    s_cmp_eq_u32 s{sROLE}, 1
    s_cbranch_scc1 L_gmain
    """)

    b = newblock('loader')
    b('L_loader:')
    if cfg.prio_l: b(f's_setprio {cfg.prio_l}')
    for j in range(3):
        if j: b(f'v_add_u32 v{vT+2}, {64*j}, v0')
        b(f'v_mul_u32_u24 v{vT+2}, 2731, {"v0" if j==0 else vr(vT+2)}')
        b(f'v_lshrrev_b32 v{vT+2}, 12, v{vT+2}')
        b(f'v_and_b32 v{vT+2}, 0x60, v{vT+2}')
        b(f'v_xor_b32 v{vP+j}, v{vT+2}, v{vT+1}')
    b(f"""
    s_lshl_b32 s{sT0}, s{sSTEP}, 1
    s_add_u32 s{sT2}, s{sCH}, 1
    s_and_b32 s{sT2}, s{sT2}, 7
    s_cmp_lt_u32 s{sT2}, 2
    s_cselect_b32 s{sT3}, s{sT0}, 0
    s_add_u32 s{sT4}, s{sW0}, s{sT3}
    s_sub_u32 s{sT3}, 0, s{sT3}
    s_waitcnt lgkmcnt(0)
    """)
    stamp(b, 0)
    def group(kind, g):
        if g == 0:
            b(f's_mov_b32 s{sA}, s{sT4}')
            b(f's_mov_b32 s{sFIX}, s{sT3}')
        else:
            b(f's_mul_i32 s{sA}, s{sSTEP}, {4*g}')
            b(f's_add_u32 s{sA}, s{sA}, s{sW0}')
            b(f's_mov_b32 s{sFIX}, 0')
        b(f's_mov_b32 s{sB}, {(g % 3) * 4 * UNIT + (VOFF if kind == "V" else 0)}')
        call(b, 'F_grp' + kind)
    def lbar(n, i):
        b(f's_waitcnt vmcnt({n})'); b('s_barrier'); stamp(b, i)
    group('K', 0); group('K', 1); group('V', 0); group('V', 1)
    lbar(48, 1)
    group('K', 2); group('V', 2)
    lbar(48, 2)
    group('K', 3)
    lbar(48, 3)
    group('V', 3)
    lbar(48, 4)
    group('K', 4)
    lbar(48, 5)
    group('V', 4)
    lbar(48, 6)
    lbar(24, 7)
    lbar(0, 8)
    if cfg.stamps == 2: store_stamps(b, 64)
    b('s_endpgm')
    for kind, srd in (('K', SK), ('V', SV)):
        b = newblock('F_grp' + kind); b(f'F_grp{kind}:')
        for u in range(4):
            b(f's_add_u32 m0, s{sB}, {u*UNIT}' if u else f's_mov_b32 m0, s{sB}')
            b(f's_add_u32 s{sX}, s{sA}, 3072')
            if cfg.win: b(f's_waitcnt vmcnt({cfg.win})')
            for j in range(3):
                b(f'buffer_load_dwordx4 v{vP+j}, {sr(srd,4)}, s{sA} offen offset:{1024*j}{ntl} lds')
            b(f's_add_u32 m0, s{sB}, {u*UNIT+3072}')
            b(f's_add_u32 s{sA}, s{sA}, s{sSTEP}')
            if cfg.win: b(f's_waitcnt vmcnt({cfg.win})')
            for j in range(3):
                b(f'buffer_load_dwordx4 v{vP+j}, {sr(srd,4)}, s{sX} offen offset:{1024*j}{ntl} lds')
            if u == 1: b(f's_add_u32 s{sA}, s{sA}, s{sFIX}')
        b(f's_setpc_b64 {sr(sRET,2)}')

    b = newblock('lmain')
    b(f"""
    v_and_b32 v{vT+2}, 1, v{vT+4}
    v_mul_u32_u24 v{vT+2}, 384, v{vT+2}
    v_add_u32 v{vT+2}, {VG}, v{vT+2}
    v_add_u32 v{vVG}, v{vT+2}, v{vT+5}
    v_lshrrev_b32 v{vT+2}, 3, v0
    v_and_b32 v{vT+5}, 7, v0
    v_mul_u32_u24 v{vOS}, 384, v{vT+2}
    v_lshl_add_u32 v{vOS}, v{vT+5}, 4, v{vOS}
    s_lshl_b32 s{sT0}, s{sW}, 11
    s_add_u32 s{sT0}, s{sT0}, {STG}
    v_xor_b32 v{vT+5}, v{vT+5}, v{vT+4}
    v_lshlrev_b32 v{vT+5}, 4, v{vT+5}
    v_lshl_add_u32 v{vT+5}, v{vT+2}, 7, v{vT+5}
    v_add_u32 v{vSR}, s{sT0}, v{vT+5}
    v_xor_b32 v{vSR+1}, 64, v{vSR}
    v_and_b32 v{vT+2}, 14, v{vT+3}
    v_xor_b32 v{vT+2}, v{vT+2}, v{vT+4}
    v_lshlrev_b32 v{vT+2}, 3, v{vT+2}
    v_lshl_add_u32 v{vT+2}, v{vT+3}, 7, v{vT+2}
    v_add_u32 v{vSW}, s{sT0}, v{vT+2}
    v_xor_b32 v{vSW+1}, 32, v{vSW}
    v_xor_b32 v{vSW+2}, 64, v{vSW}
    v_xor_b32 v{vSW+3}, 0x60, v{vSW}
    s_or_b32 s{sT0}, s{sCH}, s{sW}
    s_cmp_eq_u32 s{sT0}, 0
    s_cselect_b32 s{sX+1}, 0xffff, 0
    s_mov_b32 s{sX+2}, 0
    v_bfrev_b32 v{vT+2}, 1
    v_cndmask_b32 v{vOS0}, v{vOS}, v{vT+2}, {sr(sX+1,2)}
    s_mov_b32 s{sMG}, -1
    s_mov_b32 s{sMG+1}, 0
    v_lshlrev_b32 v{vT+4}, 2, v{vT+4}
    v_sub_u32 v{vT+2}, v{vT+4}, v{vT+3}
    """)
    for r in range(4):
        b(f'v_cmp_ge_i32 {sr(sM1+2*r,2)}, v{vT+2}, {-r}')
        b(f'v_cmp_le_i32 {sr(sM2+2*r,2)}, v{vT+2}, {-r}')
    b(f's_cmp_eq_u32 s{sDIR}, 1')
    for r in range(4):
        b(f's_cselect_b64 {sr(sTRI+2*r,2)}, {sr(sM2+2*r,2)}, {sr(sM1+2*r,2)}')
        b(f's_cselect_b64 {sr(sML+2*r,2)}, {sr(sM1+2*r,2)}, {sr(sM2+2*r,2)}')
    b(f"""
    s_cselect_b32 s{sT0}, -16, 16
    s_cselect_b32 s{sT1}, 240, 0
    s_lshl_b32 s{sT2}, s{sCH}, 8
    s_add_u32 s{sT1}, s{sT1}, s{sT2}
    s_sub_u32 s{sT2}, s{sW}, 2
    s_mul_i32 s{sT2}, s{sT2}, s{sT0}
    s_add_u32 s{sT1}, s{sT1}, s{sT2}
    s_sub_u32 s{sT1}, s{sT1}, 2
    s_movk_i32 s{sT3}, 2046
    """)
    for i, dst in enumerate((sMF, sM1, sM2)):
        b(f'v_add_u32 v{vT+2}, s{sT1}, v{vT+4}')
        if i < 2: b(f's_add_u32 s{sT1}, s{sT1}, s{sT0}')
        for r in range(4):
            if r: b(f'v_add_u32 v{vT+2}, 1, v{vT+2}')
            b(f'v_cmp_gt_u32 {sr(dst+2*r,2)}, s{sT3}, v{vT+2}')
    for r in range(4):
        b(f's_and_b64 {sr(sMF+2*r,2)}, {sr(sMF+2*r,2)}, {sr(sTRI+2*r,2)}')
    b(f's_mov_b32 s{sRING}, s{sWL}')
    b(f's_mov_b32 s{sOO}, s{sW0}')
    call(b, 'F_addr')
    def advance():
        b(f's_add_u32 s{sRING}, s{sRING}, {4*UNIT}')
        b(f's_lshl_b32 s{sT0}, s{sSTEP}, 2')
        b(f's_add_u32 s{sOO}, s{sOO}, s{sT0}')
        call(b, 'F_addr')
    stamp(b, 1)
    for s in range(4):
        vm.wait(b, [f'Q{s}', 'Kg']); b('s_barrier')
        stamp(b, 2 + 3*s)
        if s == 0 and not cfg.q1early:
            load_q(b, vQS, 1); vm.add('Q1', 6)
        call(b, 'F_qk' + 'XY'[s & 1])
        if s < 2:
            load_q(b, (vQ, vQS)[s], s + 2); vm.add(f'Q{s+2}', 6)
        b('s_barrier')
        stamp(b, 3 + 3*s)
        call(b, 'F_pv'); call(b, 'F_epi'); vm.add(f'O{s}', 6)
        stamp(b, 4 + 3*s)
        if s == 0:
            for r in range(4):
                b(f's_mov_b64 {sr(sMF+2*r,2)}, {sr(sTRI+2*r,2)}')
                b(f's_mov_b64 {sr(sM1+2*r,2)}, -1')
                b(f's_mov_b64 {sr(sM2+2*r,2)}, -1')
            b(f'v_mov_b32 v{vOS0}, v{vOS}')
        if s < 3: advance()
    if cfg.stamps:
        b(f's_cmp_eq_u32 s{sW}, 0')
        b('s_cbranch_scc0 L_end')
        store_stamps(b, 0)
    b('L_end:')
    b('s_endpgm')

    b = newblock('F_addr'); b('F_addr:')
    for i in range(5):
        b(f's_add_u32 s{sT0}, s{sRING}, {i*UNIT}')
        b(f's_sub_u32 s{sT1}, s{sT0}, {VOFF}')
        b(f's_cselect_b32 s{sT0}, s{sT0}, s{sT1}')
        for j in range(2): b(f'v_add_u32 v{vAK+2*i+j}, s{sT0}, v{vLK+j}')
        for j in range(4): b(f'v_add_u32 v{vAV+4*i+j}, s{sT0}, v{vLV+j}')
    b(f's_setpc_b64 {sr(sRET,2)}')

    S = lambda blk, r=None: vr(vS+4*blk, 4) if r is None else f'v{vS+4*blk+r}'
    for nm, qb in (('Y', vQS), ('X', vQ)):
        b = newblock('F_qk' + nm); b(f'F_qk{nm}:')
        kbuf = lambda blk, t: vr(vO + 24*(blk % 2) + 4*t, 4)
        kread = lambda blk, t: b(f'ds_read_b128 {kbuf(blk,t)}, v{vAK+2*blk+(t&1)} offset:{128*(t>>1)}')
        for blk in range(2):
            for t in range(6): kread(blk, t)
        for t in range(6):
            b(f'v_mfma_f32_16x16x32_bf16 {S(5)}, {vr(vKG+4*t,4)}, {vr(qb+4*t,4)}, {S(5) if t else 0}')
        for blk in range(5):
            for t in range(6):
                b(f'v_mfma_f32_16x16x32_bf16 {S(blk)}, {kbuf(blk,t)}, {vr(qb+4*t,4)}, {S(blk) if t else 0}')
                if blk + 2 <= 4: kread(blk+2, t)
        assert not b.q
        if nm == 'Y': b('s_branch F_sm')
        b.calls.append((len(b.out), 'F_sm'))
    b = newblock('F_sm'); b('F_sm:')
    NEG = vT + 3
    b(f'v_mov_b32 v{NEG}, 0xff800000')
    b(f'v_cndmask_b32 {S(5,0)}, v{NEG}, {S(5,0)}, {sr(sMG,2)}')
    for blk, m in ((0, sMF), (1, sM1), (2, sM2)):
        for r in range(4): b(f'v_cndmask_b32 {S(blk,r)}, v{NEG}, {S(blk,r)}, {sr(m+2*r,2)}')
    b(f'v_max3_f32 v{vT}, {S(5,0)}, {S(0,0)}, {S(0,1)}')
    b(f'v_max3_f32 v{vT}, v{vT}, {S(0,2)}, {S(0,3)}')
    for blk in range(1, 4):
        b(f'v_max3_f32 v{vT}, v{vT}, {S(blk,0)}, {S(blk,1)}')
        b(f'v_max3_f32 v{vT}, v{vT}, {S(blk,2)}, {S(blk,3)}')
    for r in range(4): b(f'v_cndmask_b32 {S(4,r)}, v{NEG}, {S(4,r)}, {sr(sML+2*r,2)}')
    b(f'v_max3_f32 v{vT}, v{vT}, {S(4,0)}, {S(4,1)}')
    b(f'v_max3_f32 v{vT}, v{vT}, {S(4,2)}, {S(4,3)}')
    def xmax(b, x, y):
        for sw in ('v_permlane32_swap_b32', 'v_permlane16_swap_b32'):
            b(f'v_mov_b32 v{y}, v{x}')
            b(f'{sw} v{x}, v{y}')
            b(f'v_max_f32 v{x}, v{x}, v{y}')
    xmax(b, vT, vT+1)
    b(f'v_mul_f32 v{vT+1}, s{sC}, v{vT}')
    vals = [(blk, r) for blk in range(5) for r in range(4)] + [(5, 0)]
    for blk, r in vals: b(f'v_fma_f32 {S(blk,r)}, {S(blk,r)}, s{sC}, -v{vT+1}')
    for blk, r in vals: b(f'v_exp_f32 {S(blk,r)}, {S(blk,r)}')
    for blk in range(5):
        for h in range(2):
            b(f'v_cvt_pk_bf16_f32 v{vPP+2*blk+h}, {S(blk,2*h)}, {S(blk,2*h+1)}')
    b(f'v_cvt_pk_bf16_f32 v{vPP+10}, {S(5,0)}, 0')
    b(f'v_mov_b32 v{vPP+11}, 0')
    b.drain()
    b(f's_setpc_b64 {sr(sRET,2)}')

    b = newblock('F_pv'); b('F_pv:')
    def vread(n):
        ks, db = divmod(n, 12)
        x = vF + 4*(n % 8)
        b(f'ds_read_b64_tr_b16 {vr(x,2)}, v{vAV+4*(2*ks)+(db&3)} offset:{128*(db>>2)}')
        if ks < 2: b(f'ds_read_b64_tr_b16 {vr(x+2,2)}, v{vAV+4*(2*ks+1)+(db&3)} offset:{128*(db>>2)}')
        else:      b(f'ds_read_b64_tr_b16 {vr(x+2,2)}, v{vVG} offset:{32*db}')
    for n in range(7): vread(n)
    for ks in range(3):
        b(f'v_mfma_f32_16x16x32_bf16 {vr(vL,4)}, {vr(vONE,4)}, {vr(vPP+4*ks,4)}, {vr(vL,4) if ks else 0}')
    for n in range(36):
        ks, db = divmod(n, 12)
        b(f'v_mfma_f32_16x16x32_bf16 {vr(vO+4*db,4)}, {vr(vF+4*(n%8),4)}, {vr(vPP+4*ks,4)}, {vr(vO+4*db,4) if ks else 0}')
        if n + 7 < 36: vread(n + 7)
    b.drain()
    b(f's_setpc_b64 {sr(sRET,2)}')

    b = newblock('F_epi'); b('F_epi:')
    b(f'v_rcp_f32 v{vT}, v{vL}')
    def ostore(pz):
        b(f'buffer_store_dwordx4 {vr(vF+8*pz,4)}, v{vOS0}, {sr(SO,4)}, s{sOO} offen offset:{128*pz}{nts}')
        b(f'buffer_store_dwordx4 {vr(vF+8*pz+4,4)}, v{vOS}, {sr(SO,4)}, s{sOO} offen offset:{3072+128*pz}{nts}')
    for pz in range(3):
        for j in range(4):
            db = 4*pz + j
            for h in range(2):
                b(f'v_pk_mul_f32 {vr(vO+4*db+2*h,2)}, {vr(vO+4*db+2*h,2)}, {vr(vT,2)} op_sel_hi:[1,0]')
            for h in range(2):
                b(f'v_cvt_pk_bf16_f32 v{vS+2*db+h}, v{vO+4*db+2*h}, v{vO+4*db+2*h+1}')
            b(f'ds_write_b64 v{vSW+j}, {vr(vS+2*db,2)}')
        if pz: ostore(pz - 1)
        b(f'ds_read_b128 {vr(vF+8*pz,4)}, v{vSR}')
        b(f'ds_read_b128 {vr(vF+8*pz+4,4)}, v{vSR+1} offset:1024')
    ostore(2)
    b.drain()
    b(f's_setpc_b64 {sr(sRET,2)}')

    gKF, gS, gP = 108, 156, 164
    gM = vT
    b = newblock('gmain'); b('L_gmain:')
    for i in range(52): b(f'v_mov_b32 v{vO+i}, 0')
    b(f'v_mov_b32 v{gM}, 0xff800000')
    def gaddr(j):
        base = ((2*j + 2) % 12) * UNIT
        for x in range(2): b(f'v_add_u32 v{vAK+x}, {base}, v{vLK+x}')
        for x in range(4): b(f'v_add_u32 v{vAV+x}, {base}, v{vLV+x}')
    def pair(j):
        gaddr(j); call(b, 'G_qk'); call(b, 'G_pv')
    gst = lambda i: stamp(b, i) if cfg.stamps == 1 else None
    gaddr(0)
    gst(1)
    b('s_waitcnt vmcnt(0)'); b('s_barrier')
    gst(2)
    call(b, 'G_qk')
    b('s_barrier')
    gst(3)
    call(b, 'G_pv'); pair(1); pair(2)
    gst(4)
    b('s_barrier')
    gaddr(3); call(b, 'G_qk')
    b('s_barrier')
    call(b, 'G_pv'); pair(4)
    gst(5)
    b('s_barrier')
    gaddr(5); call(b, 'G_qk')
    b('s_barrier')
    gst(6)
    call(b, 'G_pv'); pair(6)
    gaddr(7)
    gst(7)
    b('s_barrier')
    call(b, 'G_qk')
    gst(8)
    b('s_barrier')
    gst(9)
    call(b, 'G_pv')
    b(f'''
    s_lshl_b32 s{sT0}, s{sHEAD}, 14
    s_lshl_b32 s{sT1}, s{sCH}, 11
    s_add_u32 s{sT1}, s{sT1}, s{sT0}
    v_and_b32 v{vT+2}, 1, v0
    v_lshlrev_b32 v{vT+2}, 10, v{vT+2}
    v_and_b32 v{vT+3}, 0x30, v0
    v_add_u32 v{vT+3}, v{vT+3}, v{vT+2}
    s_mov_b32 exec_lo, 0x00030003
    s_mov_b32 exec_hi, 0x00030003
    ''')
    for db in range(12):
        b(f'buffer_store_dwordx4 {vr(vO+4*db,4)}, v{vT+3}, {sr(SWS,4)}, s{sT1} offen offset:{64*db} sc1')
    b(f'v_mov_b32 v{vT+1}, v{vL}')
    b(f's_mov_b64 exec, 3')
    b(f'buffer_store_dwordx2 {vr(vT,2)}, v{vT+2}, {sr(SWS,4)}, s{sT1} offen offset:768 sc1')
    b(f's_mov_b64 exec, -1')
    gst(10)
    b(f'''
    v_mov_b32 v{vT+4}, 1
    s_lshl_b32 s{sT1}, s{sHEAD}, 2
    v_mov_b32 v{vT+5}, s{sT1}
    s_mov_b64 exec, 1
    s_waitcnt vmcnt(0)
    buffer_atomic_add v{vT+4}, v{vT+5}, {sr(SDBG,4)}, 0 offen sc0
    s_mov_b64 exec, -1
    v_lshrrev_b32 v{vT+2}, 5, v0
    v_and_b32 v{vT+3}, 31, v0
    v_lshlrev_b32 v{vT}, 10, v{vT+2}
    v_lshl_add_u32 v{vT+1}, v{vT+3}, 5, v{vT}
    v_mul_u32_u24 v{vT+2}, 384, v{vT+2}
    v_lshl_add_u32 v{vT+2}, v{vT+3}, 4, v{vT+2}
    ''')
    gst(11)
    b(f'''
    s_waitcnt vmcnt(0)
    v_readfirstlane_b32 s{sT1}, v{vT+4}
    ''')
    gst(12)
    b(f's_cmp_eq_u32 s{sT1}, 7')
    b('s_cbranch_scc0 ' + ('L_gdone' if cfg.stamps == 1 else 'L_end2'))
    b('s_mov_b32 exec_lo, 0x00ffffff')
    b('s_mov_b32 exec_hi, 0x00ffffff')
    cD, cM = 100, 164
    for c in range(8):
        b(f'buffer_load_dwordx2 {vr(cM+2*c,2)}, v{vT}, {sr(SWS,4)}, s{sT0} offen offset:768 sc1')
        b(f'buffer_load_dwordx4 {vr(cD+8*c,4)}, v{vT+1}, {sr(SWS,4)}, s{sT0} offen sc1')
        b(f'buffer_load_dwordx4 {vr(cD+8*c+4,4)}, v{vT+1}, {sr(SWS,4)}, s{sT0} offen offset:16 sc1')
        if c < 7: b(f's_add_u32 s{sT0}, s{sT0}, 2048')
    b('s_waitcnt vmcnt(0)')
    b(f'v_max3_f32 v{vT+3}, v{cM}, v{cM+2}, v{cM+4}')
    b(f'v_max3_f32 v{vT+3}, v{vT+3}, v{cM+6}, v{cM+8}')
    b(f'v_max3_f32 v{vT+3}, v{vT+3}, v{cM+10}, v{cM+12}')
    b(f'v_max_f32 v{vT+3}, v{vT+3}, v{cM+14}')
    for c in range(8): b(f'v_sub_f32 v{cM+2*c}, v{cM+2*c}, v{vT+3}')
    for c in range(8): b(f'v_mul_f32 v{cM+2*c}, s{sC}, v{cM+2*c}')
    for c in range(8): b(f'v_exp_f32 v{cM+2*c}, v{cM+2*c}')
    b(f'v_mul_f32 v{vT+4}, v{cM}, v{cM+1}')
    for c in range(1, 8): b(f'v_fmac_f32 v{vT+4}, v{cM+2*c}, v{cM+2*c+1}')
    b(f'v_rcp_f32 v{vT+4}, v{vT+4}')
    for i in range(8): b(f'v_mul_f32 v{cD+i}, v{cM}, v{cD+i}')
    for c in range(1, 8):
        for i in range(8): b(f'v_fmac_f32 v{cD+i}, v{cM+2*c}, v{cD+8*c+i}')
    for i in range(8): b(f'v_mul_f32 v{cD+i}, v{vT+4}, v{cD+i}')
    for i in range(4): b(f'v_cvt_pk_bf16_f32 v{vF+i}, v{cD+2*i}, v{cD+2*i+1}')
    b(f'buffer_store_dwordx4 {vr(vF,4)}, v{vT+2}, {sr(SO,4)}, s{sHB} offen')
    if cfg.stamps == 1:
        b('s_mov_b64 exec, -1')
        gst(13)
        b('L_gdone:')
        store_stamps(b, 64)
    b('L_end2:')
    b('s_endpgm')

    b = newblock('G_qk'); b('G_qk:')
    for u in range(2):
        for t in range(6):
            b(f'ds_read_b128 {vr(gKF+24*u+4*t,4)}, v{vAK+(t&1)} offset:{UNIT*u+128*(t>>1)}')
    for u in range(2):
        for t in range(6):
            b(f'v_mfma_f32_16x16x32_bf16 {vr(gS+4*u,4)}, {vr(gKF+24*u+4*t,4)}, {vr(vQ+4*t,4)}, {vr(gS+4*u,4) if t else 0}')
    b(f'v_max3_f32 v{vT+2}, v{gM}, v{gS}, v{gS+1}')
    b(f'v_max3_f32 v{vT+2}, v{vT+2}, v{gS+2}, v{gS+3}')
    b(f'v_max3_f32 v{vT+2}, v{vT+2}, v{gS+4}, v{gS+5}')
    b(f'v_max3_f32 v{vT+2}, v{vT+2}, v{gS+6}, v{gS+7}')
    xmax(b, vT+2, vT+3)
    b(f'v_sub_f32 v{vT+4}, v{gM}, v{vT+2}')
    b(f'v_mul_f32 v{vT+3}, s{sC}, v{vT+2}')
    b(f'v_mul_f32 v{vT+4}, s{sC}, v{vT+4}')
    b(f'v_mov_b32 v{gM}, v{vT+2}')
    b(f'v_exp_f32 v{vT+4}, v{vT+4}')
    for i in range(8): b(f'v_fma_f32 v{gS+i}, v{gS+i}, s{sC}, -v{vT+3}')
    for i in range(8): b(f'v_exp_f32 v{gS+i}, v{gS+i}')
    for i in range(26): b(f'v_pk_mul_f32 {vr(vO+2*i,2)}, {vr(vO+2*i,2)}, {vr(vT+4,2)} op_sel_hi:[1,0]')
    for i in range(4): b(f'v_cvt_pk_bf16_f32 v{gP+i}, v{gS+2*i}, v{gS+2*i+1}')
    b.drain()
    b(f's_setpc_b64 {sr(sRET,2)}')

    b = newblock('G_pv'); b('G_pv:')
    def gvread(db):
        x = vF + 4*(db % 8)
        for u in range(2):
            b(f'ds_read_b64_tr_b16 {vr(x+2*u,2)}, v{vAV+(db&3)} offset:{UNIT*u+128*(db>>2)}')
    for db in range(7): gvread(db)
    b(f'v_mfma_f32_16x16x32_bf16 {vr(vL,4)}, {vr(vONE,4)}, {vr(gP,4)}, {vr(vL,4)}')
    for db in range(12):
        b(f'v_mfma_f32_16x16x32_bf16 {vr(vO+4*db,4)}, {vr(vF+4*(db%8),4)}, {vr(gP,4)}, {vr(vO+4*db,4)}')
        if db + 7 < 12: gvread(db + 7)
    b.drain()
    b('s_nop 7')
    b(f's_setpc_b64 {sr(sRET,2)}')

    def expand(name):
        blk = blocks[name]; out = []; pos = 0
        for at, callee in blk.calls:
            out += blk.out[pos:at] + expand(callee); pos = at
        return out + blk.out[pos:]
    for path in (['pro', 'lload', 'join', 'lmain'], ['pro', 'gload', 'join', 'gmain'], ['pro', 'loader']):
        tr = sum((expand(n) for n in path), [])
        errs = check_trace(tr)
        nb = sum(1 for i in tr if i.op == 's_barrier')
        print(f'; path {path[1]}: {len(tr)} instrs, {nb} barriers, {len(errs)} hazard errors', file=sys.stderr)
        for e in errs: print('HAZARD', e, file=sys.stderr)
        assert not errs

    order = ['pro', 'lload', 'loader', 'F_grpK', 'F_grpV', 'gload', 'join', 'lmain', 'F_addr', 'F_qkY', 'F_qkX', 'F_sm', 'F_pv', 'F_epi', 'G_qk', 'G_pv', 'gmain']
    body = '\n'.join(blocks[n].text() for n in order)
    hdr = f'''; Windowed (|i-j| <= 32) + 2 global tokens attention, B=1 H=32 S=2048 D=192, bf16.
; @launch grid=(256,1,1) block=(384,1,1) lds={LDS_TOTAL}
.amdgcn_target "amdgcn-amd-amdhsa--gfx950"
.text
.globl {NAME}
.p2align 8
.type {NAME},@function
{NAME}:
'''
    tail = f'''
.fill 256, 4, 0xbf800000
.section .rodata,"a"
.p2align 6
.amdhsa_kernel {NAME}
  .amdhsa_next_free_vgpr 256
  .amdhsa_next_free_sgpr 102
  .amdhsa_accum_offset 256
  .amdhsa_group_segment_fixed_size 0
  .amdhsa_kernarg_size 64
  .amdhsa_user_sgpr_count 2
  .amdhsa_user_sgpr_kernarg_segment_ptr 1
  .amdhsa_system_sgpr_workgroup_id_x 1
  .amdhsa_float_denorm_mode_32 3
.end_amdhsa_kernel
'''
    return hdr + body + tail

if __name__ == '__main__':
    ap = argparse.ArgumentParser()
    ap.add_argument('--ntl', default='', help='cache policy suffix for K/V DMA loads')
    ap.add_argument('--ntq', default='')
    ap.add_argument('--nts', default='')
    ap.add_argument('--pf', type=int, default=0, help='KB of code to prefetch into L2')
    ap.add_argument('--win', type=int, default=60)
    ap.add_argument('--q1early', type=int, default=1)
    ap.add_argument('--prio_c', type=int, default=0)
    ap.add_argument('--prio_g', type=int, default=0)
    ap.add_argument('--prio_l', type=int, default=0)
    ap.add_argument('--stamps', type=int, default=0)
    ap.add_argument('-o', default='-')
    a = ap.parse_args()
    for k in ('ntl', 'ntq', 'nts'):
        v = getattr(a, k)
        setattr(a, k, (' ' + v.replace('+', ' ')) if v else '')
    s = gen(a)
    if a.o == '-': print(s)
    else: open(a.o, 'w').write(s)
```

```python
import re

def regs_of(tok):
    tok = tok.strip()
    tok = tok.lstrip('-')
    if tok.startswith('abs(') or tok.startswith('|'):
        tok = tok.replace('abs(', '').replace(')', '').replace('|', '')
    m = re.fullmatch(r'([vsa])(\d+)', tok)
    if m: return {(m.group(1), int(m.group(2)))}
    m = re.fullmatch(r'([vsa])\[(\d+):(\d+)\]', tok)
    if m: return {(m.group(1), i) for i in range(int(m.group(2)), int(m.group(3)) + 1)}
    if tok == 'vcc': return {('s', 'vcc')}
    if tok == 'm0': return {('s', 'm0')}
    if tok == 'exec': return {('s', 'exec')}
    return set()

TRANS = ('v_exp_f32', 'v_log_f32', 'v_rcp_f32', 'v_rsq_f32', 'v_sqrt_f32')

class Ins:
    def __init__(self, text):
        self.text = text
        t = text.split(';')[0].strip()
        self.label = t.endswith(':')
        self.directive = t.startswith('.')
        parts = t.split(None, 1)
        self.op = parts[0] if parts else ''
        rest = parts[1] if len(parts) > 1 else ''
        ops, depth, cur = [], 0, ''
        for ch in rest:
            if ch == '[': depth += 1
            if ch == ']': depth -= 1
            if ch == ',' and depth == 0:
                ops.append(cur.strip()); cur = ''
            else: cur += ch
        if cur.strip(): ops.append(cur.strip())
        self.mods = ''
        if ops:
            last = ops[-1].split(None, 1)
            ops[-1] = last[0]
            self.mods = last[1] if len(last) > 1 else ''
        self.ops = ops
        op = self.op
        R = [regs_of(o) for o in ops]
        allr = lambda idx: set().union(*[R[i] for i in idx]) if idx else set()
        n = len(ops)
        self.w, self.r = set(), set()
        self.kind = 'other'
        self.srcc = set()
        if self.label or self.directive or not op:
            self.kind = 'none'
        elif op.startswith('v_mfma'):
            self.kind = 'mfma'; self.w = R[0]; self.r = allr([1, 2, 3]); self.srcc = R[3]; self.ab = allr([1, 2])
        elif op.startswith('ds_read'):
            self.kind = 'dsr'; self.w = R[0]; self.r = R[1]
        elif op.startswith('ds_write'):
            self.kind = 'dsw'; self.r = allr(range(n))
        elif op.startswith('buffer_load'):
            if ' lds' in (' ' + self.mods):
                self.kind = 'dma'; self.r = allr(range(n)) | {('s', 'm0')}
            else:
                self.kind = 'vload'; self.w = R[0]; self.r = allr(range(1, n))
        elif op.startswith('global_load'):
            self.kind = 'vload'; self.w = R[0]; self.r = allr(range(1, n))
        elif op.startswith('buffer_store') or op.startswith('global_store'):
            self.kind = 'vstore'; self.r = allr(range(n))
            self.data = R[0] if op.startswith('buffer') else R[1]
            self.wide = 'x4' in op or 'x3' in op
        elif op.startswith('buffer_wbl2') or op.startswith('buffer_inv'):
            self.kind = 'ctl'
        elif op.startswith('buffer_atomic'):
            self.kind = 'vload'; self.r = allr(range(n)); self.w = R[0] if 'sc0' in self.mods else set()
        elif op.startswith('v_cmp'):
            self.kind = 'valu'; self.w = R[0]; self.r = allr(range(1, n))
        elif op.startswith('v_permlane'):
            self.kind = 'valu'; self.w = allr([0, 1]); self.r = allr([0, 1]); self.perm = True
        elif op.startswith('v_readfirstlane') or op.startswith('v_readlane'):
            self.kind = 'valu'; self.w = R[0]; self.r = allr(range(1, n)); self.rl = True
        elif op.startswith('v_writelane'):
            self.kind = 'valu'; self.w = R[0]; self.r = allr(range(0, n))
        elif op.startswith('v_nop'):
            self.kind = 'valu'
        elif op.startswith('v_'):
            self.kind = 'valu'; self.w = R[0]; self.r = allr(range(1, n))
            if op.startswith('v_fmac') or op.startswith('v_pk_fmac'): self.r |= R[0]
            if op.startswith('v_cndmask') and n == 3: self.r |= {('s', 'vcc')}
            if '_co_' in op: self.w |= R[1]
        elif op in ('s_waitcnt', 's_barrier', 's_nop', 's_endpgm', 's_branch', 's_setprio', 's_sleep') or op.startswith('s_cbranch'):
            self.kind = 'ctl'
        elif op.startswith('s_cmp'):
            self.kind = 'salu'; self.r = allr(range(n))
        elif op.startswith('s_setpc'):
            self.kind = 'ctl'; self.r = R[0]
        elif op.startswith('s_load') or op.startswith('s_mem'):
            self.kind = 'smem'; self.w = R[0]; self.r = allr(range(1, n))
        elif op.startswith('s_'):
            self.kind = 'salu'; self.w = R[0]; self.r = allr(range(1, n))
        else:
            raise ValueError('unknown instruction: ' + text)
        self.trans = op.replace('_e32', '').replace('_e64', '') in TRANS
        self.perm = op.startswith('v_permlane')
        self.rl = op.startswith('v_readfirstlane') or op.startswith('v_readlane')
        self.dpp = 'row_' in self.mods or 'quad_perm' in self.mods
    def states(self):
        if self.kind == 'none': return 0
        if self.op == 's_nop': return int(self.ops[0]) + 1
        return 1

def vonly(s): return {x for x in s if x[0] in 'va'}
def sonly(s): return {x for x in s if x[0] == 's'}

def need(prod, cons):
    n = 0
    pk, ck = prod.kind, cons.kind
    vm = ck in ('vload', 'vstore', 'dma')
    if pk == 'valu':
        wv, ws = vonly(prod.w), sonly(prod.w)
        if ck == 'mfma' and wv & cons.r: n = max(n, 2)
        if ck == 'valu':
            if cons.perm and wv & cons.r: n = max(n, 2)
            if cons.dpp and wv & cons.r: n = max(n, 2)
            if cons.rl and wv & cons.r: n = max(n, 1)
            if prod.trans and wv & cons.r: n = max(n, 1)
            if ws & cons.r: n = max(n, 4 if (cons.rl or cons.op.startswith('v_writelane')) else 2)
        if prod.trans and wv & cons.r: n = max(n, 1)
        if vm and ws & cons.r: n = max(n, 5)
        if ck in ('salu', 'ctl', 'smem') and ws & cons.r: n = max(n, 2)
    if pk == 'mfma':
        d = prod.w
        if ck == 'mfma':
            if d & cons.ab: n = max(n, 8)
            if d & cons.srcc and d != cons.srcc: n = max(n, 6)
            if d & cons.w and d != cons.w: n = max(n, 6)
            if d == cons.w and not (d & cons.srcc): n = max(n, 6)
        elif ck in ('valu', 'dsr', 'dsw', 'vload', 'vstore', 'dma'):
            if d & (cons.r | cons.w): n = max(n, 8)
        if ck == 'valu' and prod.srcc & cons.w: n = max(n, 3)
    if pk == 'salu' and ('s', 'm0') in prod.w and ck == 'dma': n = max(n, 1)
    if pk == 'vstore' and prod.wide and prod.data & cons.w:
        n = max(n, 2 if ck == 'valu' else 1)
    return n

class Block:
    def __init__(self, name=''):
        self.name = name
        self.out = []
        self.q = []
        self.qo = []
        self.opt = False
        self.ahead = 0
        self.smem = set()
    def raw(self, ins):
        dist = 0
        pad = 0
        ins.opt = self.opt
        for skip in (False, True):
            dist = 0
            if skip and self.opt: break
            for p in reversed(self.out):
                if dist >= 12: break
                if p.kind == 'none' or (skip and p.opt): continue
                nd = need(p, ins)
                if nd > dist: pad = max(pad, nd - dist)
                dist += p.states()
        if pad:
            nop = Ins(f's_nop {pad-1}'); nop.opt = self.opt
            self.out.append(nop)
        self.out.append(ins)
    def __call__(self, text):
        for line in text.split('\n'):
            line = line.strip()
            if not line or line.startswith(';'): continue
            ins = Ins(line)
            if ins.op == 's_waitcnt':
                m = re.search(r'lgkmcnt\((\d+)\)', line)
                if m:
                    k = int(m.group(1))
                    if k == 0: self.smem = set()
                    if k == 0 and not self.opt: self.q = []; self.qo = []
                    else: assert k == 0 or not self.q
                self.raw(ins); continue
            touch = ins.r | ins.w
            if touch & self.smem:
                self.raw(Ins('s_waitcnt lgkmcnt(0)')); self.q = []; self.qo = []; self.smem = set()
            idx = -1
            for i, d in enumerate(self.q):
                if d & touch: idx = i
            if idx >= 0:
                assert not self.smem
                if self.opt:
                    k = min(len(self.q) - 1 - idx, 14)
                    self.raw(Ins(f's_waitcnt lgkmcnt({k})'))
                    keep = [i for i in range(len(self.q)) if i > idx or not self.qo[i]]
                    self.q = [self.q[i] for i in keep]; self.qo = [self.qo[i] for i in keep]
                else:
                    if self.ahead and not any(self.qo): idx = min(idx + self.ahead, len(self.q) - 1)
                    k = min(sum(1 for i in range(idx + 1, len(self.q)) if not self.qo[i]), 14)
                    self.raw(Ins(f's_waitcnt lgkmcnt({k})'))
                    self.q = self.q[idx + 1:]; self.qo = self.qo[idx + 1:]
            if ins.kind in ('dsr', 'dsw'):
                assert not self.smem, 'mixing smem and ds'
                if len(self.q) >= 15:
                    self.raw(Ins('s_waitcnt lgkmcnt(14)'))
                    if not self.opt and not any(self.qo): self.q = self.q[-14:]; self.qo = self.qo[-14:]
                self.q.append(set(ins.w)); self.qo.append(self.opt)
            if ins.kind == 'smem': self.smem |= ins.w
            self.raw(ins)
    def drain(self):
        if self.q or self.smem: self('s_waitcnt lgkmcnt(0)')
    def text(self):
        return '\n'.join(('' if i.label else '    ') + i.text for i in self.out)

def check_trace(seq):
    errs = []
    real = [i for i in seq if i.kind != 'none']
    for j, c in enumerate(real):
        dist = 0
        for p in reversed(real[max(0, j - 14):j]):
            if need(p, c) > dist: errs.append((p.text, c.text, need(p, c), dist))
            dist += p.states()
            if dist >= 12: break
    return errs
```

```python
import sys, argparse
from asmlib import *

NAME = 'standalone__global_local_windowed_global_tokens__prompt_kernel'
UNIT = 6144
NR = 9
VOFF = NR * UNIT
QOFF = 2 * NR * UNIT
STG = QOFF + 4 * UNIT
VG = STG + 4 * UNIT
KG = VG + 1024
FLAG = KG + 1024
LDS_TOTAL = FLAG + 128
HEADB = 786432
TENSB = 25165824
CBITS = 0x3dd53b95

def vr(a, n=1): return f'v{a}' if n == 1 else f'v[{a}:{a+n-1}]'
def sr(a, n=1): return f's{a}' if n == 1 else f's[{a}:{a+n-1}]'

SQ, SK, SV, SO, SWS, SDBG = 4, 8, 12, 16, 20, 24
sW, sHEAD, sCH, sDIR, sW0, sSTEP, sHB = 28, 29, 30, 31, 32, 33, 34
sT0, sT1, sT2, sT3, sT4 = 35, 36, 37, 38, 39
sRET = 40
sC = 42
sOO = 43
sLAND, sNEED, sBUD, sW8 = 44, 45, 46, 47
sU0 = 48
sWL = 49
sMF, sML, sM1, sM2, sTRI, sMG = 50, 58, 66, 74, 82, 90
sAK, sAV, sAQ, sFIX = 50, 51, 52, 54
sLAST = 99
sRING = 92
sX = 93
sSTAMP = 96
sROLE = 98

vP = 1
vTHR, vCNT, vCA, vPUB, vPA = 5, 6, 7, 8, 9
vFA, vDA, vDN = 1, 2, 3
vQO = 4
vOS, vOS0 = 5, 6
vSW = 7
vSR = 11
vLK = 13
vLV = 15
vVG = 19
vAK = 20
vAV = 30
vT = 50
vONE = 56
vKG = 60
vQ = 84
vAQ = 108
vS = 132
vPP = 156
vO = 168
vL = 216
vF = 220
vST = 252
vPOLL = 253

class VM:
    def __init__(self): self.q = []
    def add(self, tag, n): self.q += [tag] * n; assert len(self.q) <= 63, len(self.q)
    def wait(self, b, tags):
        idx = max([i for i, t in enumerate(self.q) if t in tags], default=-1)
        if idx < 0: return
        n = len(self.q) - 1 - idx
        self.q = self.q[idx + 1:]
        b(f's_waitcnt vmcnt({n})')

def stream_order(cfg):
    K = lambda *a: [('K', b) for b in a]
    V = lambda *a: [('V', b) for b in a]
    Q = lambda *a: [('Q', b) for b in a]
    st = Q(0) + K(-2, -1, 0, 1, 2) + Q(1) + K(3) + V(-2, -1, 0, 1, 2)
    if cfg.order == 0:
        for j in range(3, 17): st += Q(j - 1) + K(j + 1) + V(j)
        st += V(17)
    elif cfg.order == 4:
        for j in range(3, 13): st += Q(j - 1) + K(j + 1) + V(j)
        st += Q(12) + K(14) + Q(13) + K(15) + Q(14) + K(16) + Q(15) + K(17) + V(13, 14, 15, 16, 17)
    elif cfg.order == 5:
        for j in range(3, 13): st += Q(j - 1) + K(j + 1) + V(j)
        st += Q(12) + K(14) + Q(13) + K(15) + V(13) + Q(14) + K(16) + V(14) + Q(15) + K(17) + V(15, 16, 17)
    elif cfg.order == 6:
        for j in range(3, 13): st += Q(j - 1) + K(j + 1) + V(j)
        st += Q(12) + K(14, 15) + V(13, 14, 15) + Q(13) + Q(14) + K(16) + Q(15) + K(17) + V(16, 17)
    assert sorted(st) == sorted([(k, b) for k in 'KV' for b in range(-2, 18)] + Q(*range(16)))
    for k in 'KV': assert [b for kk, b in st if kk == k] == list(range(-2, 18))
    assert [b for kk, b in st if kk == 'Q'] == list(range(16))
    return st

def gen(cfg):
    ntl = cfg.ntl; nts = cfg.nts; ntq = cfg.ntq
    L = cfg.L
    st = stream_order(cfg)
    idx = {u: i for i, u in enumerate(st)}
    need = lambda k, b: idx[(k, b)] + 1
    NS = len(st)
    needqk = lambda u: max(need('K', u + 2), need('Q', u))
    def dep_qk(u): return max([needqk(u)] + ([dep_pv(u - 4)] if u >= 4 else []))
    def dep_pv(u): return max(dep_qk(u), need('V', u + 2))
    def dep_gk(j): return max([need('K', 2*j + 1)] + ([dep_gv(j - 1)] if j else []))
    def dep_gv(j): return max(dep_gk(j), need('V', 2*j + 1))
    for n, (k, b) in enumerate(st):
        deps = []
        if k == 'Q':
            if b >= 4: deps.append(dep_qk(b - 4))
        elif b - NR >= -2:
            ob = b - NR
            f = dep_qk if k == 'K' else dep_pv
            deps += [f(u) for u in range(max(0, ob - 2), min(15, ob + 2) + 1)]
            if ob >= 0: deps.append((dep_gk if k == 'K' else dep_gv)(ob // 2))
        assert not deps or max(deps) <= n - L, (k, b, deps, n)
    blocks = {}
    uid = [0]
    def cstamp(b, i):
        if cfg.stamps == 3:
            b.drain()
            b(f's_memtime {sr(sSTAMP,2)}')
            b('s_waitcnt lgkmcnt(0)')
            b(f'v_writelane_b32 v{vST}, s{sSTAMP}, {i}')
    def endstamp(b):
        if cfg.stamps == 4:
            b('s_mov_b64 exec, -1')
            b('s_waitcnt vmcnt(0)')
            b(f's_memrealtime {sr(sSTAMP,2)}')
            b(f's_lshl_b32 s{sT0}, s2, 7')
            b(f's_lshl_b32 s{sT1}, s{sROLE}, 2')
            b(f's_add_u32 s{sT0}, s{sT0}, s{sT1}')
            b(f's_add_u32 s{sT0}, s{sT0}, 0x8000000')
            b(f'v_lshlrev_b32 v{vT}, 5, v0')
            b('s_waitcnt lgkmcnt(0)')
            b(f'v_mov_b32 v{vST}, s{sSTAMP}')
            b(f'v_writelane_b32 v{vST}, s100, 1')
            b(f's_mov_b64 exec, 3')
            b(f'buffer_store_dword v{vST}, v{vT}, {sr(SWS,4)}, s{sT0} offen')
    def stamp(b, i):
        if cfg.stamps == 4: return
        if cfg.stamps == 3 and i not in (0, 14): return
        if cfg.stamps:
            b.drain()
            b(f's_memrealtime {sr(sSTAMP,2)}')
            b('s_waitcnt lgkmcnt(0)')
            b(f'v_writelane_b32 v{vST}, s{sSTAMP}, {i}')
    def store_stamps(b, off):
        if cfg.stamps:
            b('s_waitcnt vmcnt(0)')
            stamp(b, 14)
            b(f'v_writelane_b32 v{vST}, s100, 15')
            b(f's_lshl_b32 s{sT0}, s2, 7')
            b(f's_add_u32 s{sT0}, s{sT0}, {0x8000000+off}')
            b(f'v_lshlrev_b32 v{vT}, 2, v0')
            b(f's_mov_b64 exec, 0xffff')
            b(f'buffer_store_dword v{vST}, v{vT}, {sr(SWS,4)}, s{sT0} offen')
    def call(b, name):
        b.drain()
        b(f's_call_b64 {sr(sRET,2)}, {name}')
        b.calls.append((len(b.out), name))
    def newblock(name):
        b = Block(name); b.calls = []; blocks[name] = b; return b
    def setneed(b, vals):
        if isinstance(vals, int): b(f's_movk_i32 s{sNEED}, {vals}'); return
        pk = sum(v << (8*i) for i, v in enumerate(vals))
        b(f's_lshr_b32 s{sNEED}, {pk:#x}, s{sW8}')
        b(f's_and_b32 s{sNEED}, s{sNEED}, 0xff')
    def done(b, off):
        b('s_mov_b64 exec, 1')
        b(f'ds_write_b32 v{vDA}, v{vDN} offset:{off}')
        b('s_mov_b64 exec, -1')

    p = newblock('pro')
    if cfg.stamps: p(f's_memrealtime s[100:101]')
    p(f's_load_dwordx2 {sr(SK,2)}, s[0:1], 8')
    p(f's_load_dwordx2 {sr(SV,2)}, s[0:1], 16')
    p(f's_load_dwordx2 {sr(SQ,2)}, s[0:1], 0')
    p(f's_load_dwordx2 {sr(SO,2)}, s[0:1], 40')
    p(f's_load_dwordx2 {sr(SDBG,2)}, s[0:1], 48')
    p(f's_load_dwordx2 {sr(SWS,2)}, s[0:1], 56')
    p(f's_cmp_ge_u32 s2, 256')
    p(f's_cbranch_scc1 L_end')
    p(f"""
    v_lshrrev_b32 v{vT}, 6, v0
    v_and_b32 v0, 63, v0
    v_readfirstlane_b32 s{sROLE}, v{vT}
    s_and_b32 s{sT0}, s2, 7
    s_lshr_b32 s{sT1}, s2, 3
    s_lshr_b32 s{sT2}, s{sT1}, 3
    s_lshl_b32 s{sHEAD}, s{sT0}, 2
    s_add_u32 s{sHEAD}, s{sHEAD}, s{sT2}
    s_and_b32 s{sCH}, s{sT1}, 7
    s_and_b32 s{sDIR}, s{sCH}, 1
    s_mul_i32 s{sHB}, s{sHEAD}, {HEADB}
    s_mul_i32 s{sT0}, s{sCH}, {16*UNIT}
    s_add_u32 s{sT0}, s{sT0}, s{sHB}
    s_movk_i32 s{sSTEP}, {UNIT}
    s_cmp_eq_u32 s{sDIR}, 1
    s_cselect_b32 s{sSTEP}, {-UNIT}, s{sSTEP}
    s_cselect_b32 s{sT1}, {15*UNIT}, 0
    s_add_u32 s{sU0}, s{sT0}, s{sT1}
    v_lshlrev_b32 v{vT+1}, 4, v0
    s_mov_b32 s{sBUD}, 0x40000
    """)
    for srd, size in ((SQ, TENSB), (SK, TENSB), (SV, TENSB)):
        p(f's_mov_b32 s{srd+2}, {size}')
        p(f's_mov_b32 s{srd+3}, 0x20000')
    if cfg.stamps:
        p(f's_mov_b32 s{SWS+2}, 0x10000000')
        p(f's_mov_b32 s{SWS+3}, 0x20000')
        p(f'v_mov_b32 v{vST}, 0')
    p(f's_cmp_lg_u32 s{sROLE}, 0')
    p(f's_cbranch_scc1 L_cons')

    b = newblock('loader')
    b('L_loader:')
    if cfg.prio_l: b(f's_setprio {cfg.prio_l}')
    for j in range(3):
        if j: b(f'v_add_u32 v{vT+2}, {64*j}, v0')
        b(f'v_mul_u32_u24 v{vT+2}, 2731, {"v0" if j==0 else vr(vT+2)}')
        b(f'v_lshrrev_b32 v{vT+2}, 12, v{vT+2}')
        b(f'v_and_b32 v{vT+2}, 0x60, v{vT+2}')
        b(f'v_xor_b32 v{vP+j}, v{vT+2}, v{vT+1}')
    b(f"""
    s_lshl_b32 s{sT0}, s{sSTEP}, 1
    s_add_u32 s{sT2}, s{sCH}, 1
    s_and_b32 s{sT2}, s{sT2}, 7
    s_cmp_lt_u32 s{sT2}, 2
    s_cselect_b32 s{sFIX}, s{sT0}, 0
    s_sub_u32 s{sAK}, s{sU0}, s{sT0}
    s_add_u32 s{sAK}, s{sAK}, s{sFIX}
    s_mov_b32 s{sAV}, s{sAK}
    s_mov_b32 s{sAQ}, s{sU0}
    s_mov_b32 m0, {KG}
    v_and_b32 v{vCA}, 31, v0
    v_lshlrev_b32 v{vCA}, 2, v{vCA}
    v_add_u32 v{vCA}, {FLAG}, v{vCA}
    v_mov_b32 v{vTHR}, 0
    v_mov_b32 v{vCNT}, 0
    v_mov_b32 v{vPA}, {FLAG+64}
    s_waitcnt lgkmcnt(0)
    ds_write_b32 v{vCA}, v{vTHR}
    """)
    stamp(b, 0)
    b(f'buffer_load_dwordx4 v{vT+1}, {sr(SK,4)}, s{sHB} offen lds')
    b(f's_mov_b32 m0, {VG}')
    b(f'buffer_load_dwordx4 v{vT+1}, {sr(SV,4)}, s{sHB} offen lds')
    cur = {}
    for n, (k, u) in enumerate(st):
        if n == cfg.barpos:
            b('s_waitcnt lgkmcnt(0)'); b('s_barrier')
        thr = []
        if k == 'Q':
            if u >= 4: thr.append((u % 4, u // 4))
        elif u - NR >= -2:
            ob = u - NR; t = ob + 2; base = 0 if k == 'K' else 8
            thr.append((base + t % 4, t // 4 + 1))
            if ob >= 0: thr.append((base + 4, ob // 2 + 1))
        thr = [(l, v) for l, v in thr if cur.get(l, 0) < v]
        for l, v in thr:
            cur[l] = v
            b(f'v_writelane_b32 v{vTHR}, {v}, {l}')
        if thr:
            uid[0] += 1
            b(f'L_fr{uid[0]}:')
            b(f'v_cmp_lt_u32 vcc, v{vCNT}, v{vTHR}')
            b('s_nop 1')
            b(f's_cbranch_vccz L_ok{uid[0]}')
            b(f'ds_read_b32 v{vCNT}, v{vCA}')
            b(f's_sub_u32 s{sBUD}, s{sBUD}, 1')
            b('s_waitcnt lgkmcnt(0)')
            b(f's_cbranch_scc0 L_fr{uid[0]}')
            b(f's_mov_b32 s{sBUD}, 0')
            b(f'L_ok{uid[0]}:')
        srd, sa = {'K': (SK, sAK), 'V': (SV, sAV), 'Q': (SQ, sAQ)}[k]
        base = QOFF + (u % 4) * UNIT if k == 'Q' else ((u + 2) % NR) * UNIT + (VOFF if k == "V" else 0)
        pol = ntq if k == 'Q' else ntl
        b(f's_mov_b32 m0, {base}')
        b(f's_add_u32 s{sX}, s{sa}, 3072')
        for j in range(3):
            b(f'buffer_load_dwordx4 v{vP+j}, {sr(srd,4)}, s{sa} offen offset:{1024*j}{pol} lds')
        b(f's_mov_b32 m0, {base+3072}')
        b(f's_add_u32 s{sa}, s{sa}, s{sSTEP}')
        for j in range(3):
            b(f'buffer_load_dwordx4 v{vP+j}, {sr(srd,4)}, s{sX} offen offset:{1024*j}{pol} lds')
        if n + 1 - L > 0:
            b(f'v_mov_b32 v{vPUB}, {n + 1 - L}')
            b('s_mov_b64 exec, 1')
            b(f's_waitcnt vmcnt({6*L})')
            b(f'ds_write_b32 v{vPA}, v{vPUB}')
            b('s_mov_b64 exec, -1')
            b.q = []
        if u == -1 and k != 'Q': b(f's_sub_u32 s{sAK if k == "K" else sAV}, s{sAK if k == "K" else sAV}, s{sFIX}')
        if cfg.stamps == 2 and n in (5, 12, 20, 30, 40, 48, 55): stamp(b, (5, 12, 20, 30, 40, 48, 55).index(n) + 1)
    b('s_mov_b64 exec, 1')
    for j in range(L - 1, -1, -1):
        b(f'v_mov_b32 v{vPUB}, {NS - j}')
        b(f's_waitcnt vmcnt({6*j})')
        b(f'ds_write_b32 v{vPA}, v{vPUB}')
    b.drain()
    if cfg.stamps == 2:
        b('s_mov_b64 exec, -1')
        store_stamps(b, 64)
    endstamp(b)
    b('s_endpgm')
    b = newblock('cons')
    b('L_cons:')
    b(f"""
    s_mov_b32 s{SO+2}, {TENSB}
    s_mov_b32 s{SO+3}, 0x20000
    v_and_b32 v{vT+3}, 15, v0
    v_lshrrev_b32 v{vT+4}, 4, v0
    v_mul_u32_u24 v{vT+5}, 384, v{vT+3}
    v_lshl_add_u32 v{vQO}, v{vT+4}, 4, v{vT+5}
    s_lshl_b32 s{sT0}, s{sROLE}, 2
    s_lshr_b32 s{sW}, {cfg.wmap:#x}, s{sT0}
    s_and_b32 s{sW}, s{sW}, 7
    s_waitcnt lgkmcnt(0)
    s_cmp_lg_u32 s{sROLE}, 1
    s_cbranch_scc1 L_join
    """)
    b = newblock('gload')
    if cfg.prio_g: b(f's_setprio {cfg.prio_g}')
    if cfg.pf:
        b(f's_getpc_b64 {sr(sX+1,2)}')
        b('L_pc:')
        b(f's_add_u32 s{sX+1}, s{sX+1}, L_join-L_pc')
        b(f's_addc_u32 s{sX+2}, s{sX+2}, 0')
        b(f'v_mov_b32 v{vF+1}, s{sX+2}')
        b(f'v_add_co_u32 v{vF}, vcc, s{sX+1}, v{vT+1}')
        b(f'v_addc_co_u32 v{vF+1}, vcc, 0, v{vF+1}, vcc')
        for i in range(cfg.pf):
            if i and i % 4 == 0:
                b(f'v_add_co_u32 v{vF}, vcc, 4096, v{vF}')
                b(f'v_addc_co_u32 v{vF+1}, vcc, 0, v{vF+1}, vcc')
            b(f'global_load_dwordx4 {vr(vF+4,4)}, {vr(vF,2)}, off offset:{1024*(i%4)}')
    b(f"""
    v_and_b32 v{vT+2}, 1, v0
    v_mul_u32_u24 v{vT+2}, 384, v{vT+2}
    v_lshl_add_u32 v{vT+2}, v{vT+4}, 4, v{vT+2}
    """)
    stamp(b, 0)
    for t in range(6):
        b(f'buffer_load_dwordx4 {vr(vQ+4*t,4)}, v{vT+2}, {sr(SQ,4)}, s{sHB} offen offset:{64*t}')

    b = newblock('join')
    b('L_join:')
    b(f"""
    s_mov_b32 s{sC}, {CBITS:#x}
    s_mov_b32 s{sLAND}, 0
    s_lshl_b32 s{sT0}, s{sW}, 2
    s_add_u32 s{sT0}, s{sT0}, {FLAG}
    v_mov_b32 v{vDA}, s{sT0}
    v_mov_b32 v{vFA}, {FLAG+64}
    v_lshlrev_b32 v{vT+2}, 4, v{vT+3}
    v_and_b32 v{vT+2}, 0x60, v{vT+2}
    v_xor_b32 v{vLK}, v{vT+2}, v{vQO}
    v_xor_b32 v{vLK+1}, 64, v{vLK}
    v_lshrrev_b32 v{vT+2}, 2, v0
    v_mul_u32_u24 v{vLV}, 384, v{vT+2}
    v_lshlrev_b32 v{vT+2}, 4, v{vT+2}
    v_and_b32 v{vT+2}, 0x60, v{vT+2}
    v_and_b32 v{vT+5}, 3, v0
    v_lshlrev_b32 v{vT+5}, 3, v{vT+5}
    v_add3_u32 v{vLV}, v{vLV}, v{vT+2}, v{vT+5}
    v_add_u32 v{vLV}, {VOFF}, v{vLV}
    v_xor_b32 v{vLV+1}, 32, v{vLV}
    v_xor_b32 v{vLV+2}, 64, v{vLV}
    v_xor_b32 v{vLV+3}, 0x60, v{vLV}
    v_mov_b32 v{vONE}, 0x3f803f80
    v_mov_b32 v{vONE+1}, 0x3f803f80
    v_mov_b32 v{vONE+2}, 0x3f803f80
    v_mov_b32 v{vONE+3}, 0x3f803f80
    s_cmp_eq_u32 s{sROLE}, 1
    s_cbranch_scc1 L_gmain
    """)
    b = newblock('ojoin')
    b(f"""
    v_and_b32 v{vT+2}, 1, v{vT+4}
    v_mul_u32_u24 v{vT+2}, 384, v{vT+2}
    v_add_u32 v{vT+2}, {VG}, v{vT+2}
    v_add_u32 v{vVG}, v{vT+2}, v{vT+5}
    v_lshrrev_b32 v{vT+2}, 3, v0
    v_and_b32 v{vT+5}, 7, v0
    v_mul_u32_u24 v{vOS}, 384, v{vT+2}
    v_lshl_add_u32 v{vOS}, v{vT+5}, 4, v{vOS}
    v_xor_b32 v{vT+5}, v{vT+5}, v{vT+4}
    v_lshlrev_b32 v{vT+5}, 4, v{vT+5}
    v_lshl_add_u32 v{vT+5}, v{vT+2}, 7, v{vT+5}
    v_add_u32 v{vSR}, {STG}, v{vT+5}
    v_xor_b32 v{vSR+1}, 64, v{vSR}
    s_cmp_eq_u32 s{sROLE}, 2
    s_cbranch_scc1 L_storer
    """)

    b = newblock('lmain')
    if cfg.prio_c: b(f's_setprio {cfg.prio_c}')
    b(f"""
    s_mul_i32 s{sT1}, s{sW}, s{sSTEP}
    s_add_u32 s{sW0}, s{sU0}, s{sT1}
    s_mul_i32 s{sWL}, s{sW}, {UNIT}
    s_lshl_b32 s{sW8}, s{sW}, 3
    s_mov_b32 s{sLAST}, 0
    v_add_u32 v{vSR}, s{sWL}, v{vSR}
    v_add_u32 v{vSR+1}, s{sWL}, v{vSR+1}
    s_add_u32 s{sT0}, s{sWL}, {STG}
    v_and_b32 v{vT+2}, 14, v{vT+3}
    v_xor_b32 v{vT+2}, v{vT+2}, v{vT+4}
    v_lshlrev_b32 v{vT+2}, 3, v{vT+2}
    v_lshl_add_u32 v{vT+2}, v{vT+3}, 7, v{vT+2}
    v_add_u32 v{vSW}, s{sT0}, v{vT+2}
    v_xor_b32 v{vSW+1}, 32, v{vSW}
    v_xor_b32 v{vSW+2}, 64, v{vSW}
    v_xor_b32 v{vSW+3}, 0x60, v{vSW}
    s_add_u32 s{sT0}, s{sWL}, {QOFF}
    v_add_u32 v{vAQ}, s{sT0}, v{vLK}
    v_add_u32 v{vAQ+1}, s{sT0}, v{vLK+1}
    s_mov_b32 s{sMG}, -1
    s_mov_b32 s{sMG+1}, 0
    v_bfe_u32 v{vT}, v0, 2, 1
    v_mul_u32_u24 v{vT}, 384, v{vT}
    v_lshl_add_u32 v{vT}, v{vT+4}, 4, v{vT}
    v_add_u32 v{vT}, {KG}, v{vT}
    v_lshlrev_b32 v{vT+4}, 2, v{vT+4}
    v_sub_u32 v{vT+2}, v{vT+4}, v{vT+3}
    """)
    for r in range(4):
        b(f'v_cmp_ge_i32 {sr(sM1+2*r,2)}, v{vT+2}, {-r}')
        b(f'v_cmp_le_i32 {sr(sM2+2*r,2)}, v{vT+2}, {-r}')
    b(f's_cmp_eq_u32 s{sDIR}, 1')
    for r in range(4):
        b(f's_cselect_b64 {sr(sTRI+2*r,2)}, {sr(sM2+2*r,2)}, {sr(sM1+2*r,2)}')
        b(f's_cselect_b64 {sr(sML+2*r,2)}, {sr(sM1+2*r,2)}, {sr(sM2+2*r,2)}')
    b(f"""
    s_cselect_b32 s{sT0}, -16, 16
    s_cselect_b32 s{sT1}, 240, 0
    s_lshl_b32 s{sT2}, s{sCH}, 8
    s_add_u32 s{sT1}, s{sT1}, s{sT2}
    s_sub_u32 s{sT2}, s{sW}, 2
    s_mul_i32 s{sT2}, s{sT2}, s{sT0}
    s_add_u32 s{sT1}, s{sT1}, s{sT2}
    s_sub_u32 s{sT1}, s{sT1}, 2
    s_movk_i32 s{sT3}, 2046
    """)
    for i, dst in enumerate((sMF, sM1, sM2)):
        b(f'v_add_u32 v{vT+2}, s{sT1}, v{vT+4}')
        if i < 2: b(f's_add_u32 s{sT1}, s{sT1}, s{sT0}')
        for r in range(4):
            if r: b(f'v_add_u32 v{vT+2}, 1, v{vT+2}')
            b(f'v_cmp_gt_u32 {sr(dst+2*r,2)}, s{sT3}, v{vT+2}')
    for r in range(4):
        b(f's_and_b64 {sr(sMF+2*r,2)}, {sr(sMF+2*r,2)}, {sr(sTRI+2*r,2)}')
    b(f's_mov_b32 s{sRING}, s{sWL}')
    b(f's_mul_i32 s{sOO}, s{sSTEP}, 12')
    b(f's_add_u32 s{sOO}, s{sOO}, s{sW0}')
    call(b, 'F_addr')
    b('s_barrier')
    stamp(b, 1)
    setneed(b, 1); call(b, 'F_poll')
    for t in range(6): b(f'ds_read_b128 {vr(vKG+4*t,4)}, v{vT} offset:{64*t}')
    for s in range(4):
        b(f'v_mov_b32 v{vDN}, {s+1}')
        if s == 3 and cfg.selfst: b(f's_mov_b32 s{sLAST}, 1')
        setneed(b, [needqk(4*s + w) for w in range(4)])
        call(b, 'F_poll')
        stamp(b, 2 + 3*s)
        call(b, 'F_qk')
        if s:
            b(f's_movk_i32 s{sNEED}, {s}')
            call(b, 'F_pollo')
        setneed(b, [need('V', 4*s + w) for w in range(4)])
        call(b, 'F_poll')
        call(b, 'F_pvA')
        setneed(b, [need('V', 4*s + w + 2) for w in range(4)])
        call(b, 'F_poll')
        stamp(b, 3 + 3*s)
        call(b, 'F_pvB')
        stamp(b, 4 + 3*s)
        if s == 0:
            for r in range(4):
                b(f's_mov_b64 {sr(sMF+2*r,2)}, {sr(sTRI+2*r,2)}')
                b(f's_mov_b64 {sr(sM1+2*r,2)}, -1')
                b(f's_mov_b64 {sr(sM2+2*r,2)}, -1')
        if s < 3:
            b(f's_add_u32 s{sRING}, s{sRING}, {4*UNIT}')
            b(f's_sub_u32 s{sT1}, s{sRING}, {VOFF}')
            b(f's_cselect_b32 s{sRING}, s{sRING}, s{sT1}')
            call(b, 'F_addr')
    endstamp(b)
    if cfg.stamps and cfg.stamps != 4:
        b(f's_cmp_eq_u32 s{sW}, {cfg.sw}')
        b('s_cbranch_scc0 L_end')
        store_stamps(b, 0)
    b('L_end:')
    b('s_endpgm')

    b = newblock('storer'); b('L_storer:')
    b(f"""
    s_cmp_eq_u32 s{sCH}, 0
    s_cselect_b32 s{sX+1}, 0xffff, 0
    s_mov_b32 s{sX+2}, 0
    v_bfrev_b32 v{vT+2}, 1
    v_cndmask_b32 v{vOS0}, v{vOS}, v{vT+2}, {sr(sX+1,2)}
    s_mov_b32 s{sOO}, s{sU0}
    v_mov_b32 v{vDA}, {FLAG}
    s_barrier
    """)
    for u in range(12 if cfg.selfst else 16):
        w = u % 4
        uid[0] += 1
        b(f'v_mov_b32 v{vDN}, {u//4 + 1}')
        b(f'L_sp{uid[0]}:')
        b(f'ds_read_b32 v{vPOLL}, v{vDA} offset:{80 + 4*w}')
        b(f's_sub_u32 s{sBUD}, s{sBUD}, 1')
        b(f's_cbranch_scc1 L_sx{uid[0]}')
        b('s_waitcnt lgkmcnt(0)')
        b(f'v_readfirstlane_b32 s{sLAND}, v{vPOLL}')
        b(f's_cmp_gt_u32 s{sLAND}, {u//4}')
        b(f's_cbranch_scc0 L_sp{uid[0]}')
        b(f's_branch L_sy{uid[0]}')
        b(f'L_sx{uid[0]}:')
        b(f's_mov_b32 s{sBUD}, 0')
        b('s_waitcnt lgkmcnt(0)')
        b(f'L_sy{uid[0]}:')
        for pz in range(3):
            for i in range(2):
                b(f'ds_read_b128 {vr(vS+8*pz+4*i,4)}, v{vSR+i} offset:{w*UNIT + 2048*pz + 1024*i}')
        done(b, 96 + 4*w)
        nts = cfg.nts if u < cfg.ntsw else cfg.nts2
        for pz in range(3):
            b(f'buffer_store_dwordx4 {vr(vS+8*pz,4)}, v{vOS0 if u == 0 else vOS}, {sr(SO,4)}, s{sOO} offen offset:{128*pz}{nts}')
            b(f'buffer_store_dwordx4 {vr(vS+8*pz+4,4)}, v{vOS}, {sr(SO,4)}, s{sOO} offen offset:{3072+128*pz}{nts}')
        b(f's_add_u32 s{sOO}, s{sOO}, s{sSTEP}')
        b.drain()
        if cfg.wb and u == cfg.wbat:
            b(f's_and_b32 s{sT0}, s2, {cfg.wb - 1 << 3}')
            b(f's_cmp_eq_u32 s{sT0}, 0')
            b('s_cbranch_scc0 L_nowb')
            b('buffer_wbl2 sc1')
            b('L_nowb:')
    endstamp(b)
    b('s_endpgm')

    b = newblock('F_pollo'); b('F_pollo:')
    b(f'ds_read_b32 v{vPOLL}, v{vDA} offset:96')
    b(f's_sub_u32 s{sBUD}, s{sBUD}, 1')
    b('s_cbranch_scc1 F_pollo_x')
    b('s_waitcnt lgkmcnt(0)')
    b(f'v_readfirstlane_b32 s{sT0}, v{vPOLL}')
    b(f's_cmp_ge_u32 s{sT0}, s{sNEED}')
    b('s_cbranch_scc0 F_pollo')
    b(f's_setpc_b64 {sr(sRET,2)}')
    b('F_pollo_x:')
    b(f's_mov_b32 s{sBUD}, 0')
    b('s_waitcnt lgkmcnt(0)')
    b(f's_setpc_b64 {sr(sRET,2)}')

    b = newblock('F_poll'); b('F_poll:')
    b(f's_cmp_ge_u32 s{sLAND}, s{sNEED}')
    b('s_cbranch_scc1 F_poll_ok')
    b(f'ds_read_b32 v{vPOLL}, v{vFA}')
    b(f's_sub_u32 s{sBUD}, s{sBUD}, 1')
    b('s_waitcnt lgkmcnt(0)')
    b(f'v_readfirstlane_b32 s{sLAND}, v{vPOLL}')
    b('s_nop 0')
    b('s_cbranch_scc0 F_poll')
    b(f's_mov_b32 s{sBUD}, 0')
    b('F_poll_ok:')
    b(f's_setpc_b64 {sr(sRET,2)}')

    b = newblock('F_addr'); b('F_addr:')
    for i in range(5):
        b(f's_add_u32 s{sT0}, s{sRING}, {i*UNIT}')
        b(f's_sub_u32 s{sT1}, s{sT0}, {VOFF}')
        b(f's_cselect_b32 s{sT0}, s{sT0}, s{sT1}')
        for j in range(2): b(f'v_add_u32 v{vAK+2*i+j}, s{sT0}, v{vLK+j}')
        for j in range(4): b(f'v_add_u32 v{vAV+4*i+j}, s{sT0}, v{vLV+j}')
    b(f's_setpc_b64 {sr(sRET,2)}')

    S = lambda blk, r=None: vr(vS+4*blk, 4) if r is None else f'v{vS+4*blk+r}'
    b = newblock('F_qk'); b('F_qk:')
    cstamp(b, 1)
    kbuf = lambda blk, t: vr(vO + 24*(blk % 2) + 4*t, 4)
    kread = lambda blk, t: b(f'ds_read_b128 {kbuf(blk,t)}, v{vAK+2*blk+(t&1)} offset:{128*(t>>1)}')
    for t in range(6): b(f'ds_read_b128 {vr(vQ+4*t,4)}, v{vAQ+(t&1)} offset:{128*(t>>1)}')
    for t in range(6): kread(0, t)
    for t in range(6):
        b(f'v_mfma_f32_16x16x32_bf16 {S(5)}, {vr(vKG+4*t,4)}, {vr(vQ+4*t,4)}, {S(5) if t else 0}')
        kread(1, t)
    for blk in range(5):
        for t in range(6):
            b(f'v_mfma_f32_16x16x32_bf16 {S(blk)}, {kbuf(blk,t)}, {vr(vQ+4*t,4)}, {S(blk) if t else 0}')
            if blk + 2 <= 4: kread(blk+2, t)
        if blk == 2: done(b, 0)
    cstamp(b, 2)
    NEG = vT + 3
    b(f'v_mov_b32 v{NEG}, 0xff800000')
    b(f'v_cndmask_b32 {S(5,0)}, v{NEG}, {S(5,0)}, {sr(sMG,2)}')
    for blk, m in ((0, sMF), (1, sM1), (2, sM2)):
        for r in range(4): b(f'v_cndmask_b32 {S(blk,r)}, v{NEG}, {S(blk,r)}, {sr(m+2*r,2)}')
    b(f'v_max3_f32 v{vT}, {S(5,0)}, {S(0,0)}, {S(0,1)}')
    b(f'v_max3_f32 v{vT}, v{vT}, {S(0,2)}, {S(0,3)}')
    for blk in range(1, 4):
        b(f'v_max3_f32 v{vT}, v{vT}, {S(blk,0)}, {S(blk,1)}')
        b(f'v_max3_f32 v{vT}, v{vT}, {S(blk,2)}, {S(blk,3)}')
    for r in range(4): b(f'v_cndmask_b32 {S(4,r)}, v{NEG}, {S(4,r)}, {sr(sML+2*r,2)}')
    b(f'v_max3_f32 v{vT}, v{vT}, {S(4,0)}, {S(4,1)}')
    b(f'v_max3_f32 v{vT}, v{vT}, {S(4,2)}, {S(4,3)}')
    def xmax(b, x, y):
        for sw in ('v_permlane32_swap_b32', 'v_permlane16_swap_b32'):
            b(f'v_mov_b32 v{y}, v{x}')
            b(f'{sw} v{x}, v{y}')
            b(f'v_max_f32 v{x}, v{x}, v{y}')
    xmax(b, vT, vT+1)
    b(f'v_mul_f32 v{vT+1}, s{sC}, v{vT}')
    vals = [(blk, r) for blk in range(5) for r in range(4)] + [(5, 0)]
    for blk, r in vals: b(f'v_fma_f32 {S(blk,r)}, {S(blk,r)}, s{sC}, -v{vT+1}')
    for blk, r in vals: b(f'v_exp_f32 {S(blk,r)}, {S(blk,r)}')
    pbase = {0: 0, 1: 4, 2: 6, 3: 8, 4: 10}
    for blk in range(5):
        for h in range(2):
            b(f'v_cvt_pk_bf16_f32 v{vPP+pbase[blk]+h}, {S(blk,2*h)}, {S(blk,2*h+1)}')
    b(f'v_cvt_pk_bf16_f32 v{vPP+2}, {S(5,0)}, 0')
    b(f'v_mov_b32 v{vPP+3}, 0')
    cstamp(b, 3)
    b.drain()
    b(f's_setpc_b64 {sr(sRET,2)}')

    KS = ((0, 'g'), (1, 2), (3, 4))
    def vread(b, n):
        ks, db = divmod(n, 12)
        x = vF + 4*(n % 8)
        for h, blk in enumerate(KS[ks]):
            if blk == 'g': b(f'ds_read_b64_tr_b16 {vr(x+2*h,2)}, v{vVG} offset:{32*db}')
            else: b(f'ds_read_b64_tr_b16 {vr(x+2*h,2)}, v{vAV+4*blk+(db&3)} offset:{128*(db>>2)}')
    def pvm(b, n):
        ks, db = divmod(n, 12)
        b(f'v_mfma_f32_16x16x32_bf16 {vr(vO+4*db,4)}, {vr(vF+4*(n%8),4)}, {vr(vPP+4*ks,4)}, {vr(vO+4*db,4) if ks else 0}')
    b = newblock('F_pvA'); b('F_pvA:')
    cstamp(b, 4)
    for n in range(7): vread(b, n)
    for ks in range(3):
        b(f'v_mfma_f32_16x16x32_bf16 {vr(vL,4)}, {vr(vONE,4)}, {vr(vPP+4*ks,4)}, {vr(vL,4) if ks else 0}')
    for n in range(24):
        pvm(b, n)
        if n + 7 < 24: vread(b, n + 7)
    b(f'v_rcp_f32 v{vT}, v{vL}')
    b.drain()
    b(f's_setpc_b64 {sr(sRET,2)}')

    b = newblock('F_pvB'); b('F_pvB:')
    cstamp(b, 5)
    def optional(f):
        if not cfg.selfst: return
        uid[0] += 1
        b(f's_cbranch_scc0 L_sk{uid[0]}')
        b.opt = True; f(); b.opt = False
        b(f'L_sk{uid[0]}:')
    def ostore(pz):
        b(f'buffer_store_dwordx4 {vr(vS+8*pz,4)}, v{vOS}, {sr(SO,4)}, s{sOO} offen offset:{128*pz}{cfg.nts2}')
        b(f'buffer_store_dwordx4 {vr(vS+8*pz+4,4)}, v{vOS}, {sr(SO,4)}, s{sOO} offen offset:{3072+128*pz}{cfg.nts2}')
    def oread(pz):
        b(f'ds_read_b128 {vr(vS+8*pz,4)}, v{vSR} offset:{2048*pz}')
        b(f'ds_read_b128 {vr(vS+8*pz+4,4)}, v{vSR+1} offset:{2048*pz+1024}')
    def fin(db):
        for h in range(2):
            b(f'v_pk_mul_f32 {vr(vO+4*db+2*h,2)}, {vr(vO+4*db+2*h,2)}, {vr(vT,2)} op_sel_hi:[1,0]')
        for h in range(2):
            b(f'v_cvt_pk_bf16_f32 v{vO+4*db+h}, v{vO+4*db+2*h}, v{vO+4*db+2*h+1}')
        b(f'ds_write_b64 v{vSW+(db&3)}, {vr(vO+4*db,2)} offset:{2048*(db//4)}')
        if db == 11: done(b, 80)
        if db % 4 == 3: optional(lambda: oread(db // 4))
        if db % 4 == 1 and db > 4: optional(lambda: ostore(db // 4 - 1))
    b(f's_cmp_eq_u32 s{sLAST}, 1')
    for n in range(24, 31): vread(b, n)
    LAG = cfg.lag
    for n in range(24, 36):
        pvm(b, n)
        if n + 7 < 36: vread(b, n + 7)
        if n + 7 == 35: done(b, 32)
        if n - 24 - LAG >= 0: fin(n - 24 - LAG)
    for db in range(12 - LAG, 12): fin(db)
    optional(lambda: ostore(2))
    cstamp(b, 6)
    b.drain()
    b(f's_setpc_b64 {sr(sRET,2)}')

    gKF, gS, gP = 108, 156, 164
    gM = vT
    b = newblock('gmain'); b('L_gmain:')
    b(f's_mov_b32 s{SDBG+2}, 256')
    b(f's_mov_b32 s{SDBG+3}, 0x20000')
    if not cfg.stamps:
        b(f's_mov_b32 s{SWS+2}, {256*2048}')
        b(f's_mov_b32 s{SWS+3}, 0x20000')
    for i in range(52): b(f'v_mov_b32 v{vO+i}, 0')
    b(f'v_mov_b32 v{gM}, 0xff800000')
    gst = lambda i: stamp(b, i) if cfg.stamps == 1 else None
    b('s_barrier')
    gst(1)
    b('s_waitcnt vmcnt(0)')
    for j in range(8):
        for u in range(2):
            base = ((2*j + u + 2) % NR) * UNIT
            for x in range(2): b(f'v_add_u32 v{vAK+2*u+x}, {base}, v{vLK+x}')
            for x in range(4): b(f'v_add_u32 v{vAV+4*u+x}, {base}, v{vLV+x}')
        b(f'v_mov_b32 v{vDN}, {j+1}')
        setneed(b, need('K', 2*j + 1)); call(b, 'F_poll')
        call(b, 'G_qk')
        setneed(b, need('V', 2*j + 1)); call(b, 'F_poll')
        gst(2 + j)
        call(b, 'G_pv')
    b(f'''
    s_lshl_b32 s{sT0}, s{sHEAD}, 14
    s_lshl_b32 s{sT1}, s{sCH}, 11
    s_add_u32 s{sT1}, s{sT1}, s{sT0}
    v_and_b32 v{vT+2}, 1, v0
    v_lshlrev_b32 v{vT+2}, 10, v{vT+2}
    v_and_b32 v{vT+3}, 0x30, v0
    v_add_u32 v{vT+3}, v{vT+3}, v{vT+2}
    s_mov_b32 exec_lo, 0x00030003
    s_mov_b32 exec_hi, 0x00030003
    ''')
    for db in range(12):
        b(f'buffer_store_dwordx4 {vr(vO+4*db,4)}, v{vT+3}, {sr(SWS,4)}, s{sT1} offen offset:{64*db} sc1')
    b(f'v_mov_b32 v{vT+1}, v{vL}')
    b(f's_mov_b64 exec, 3')
    b(f'buffer_store_dwordx2 {vr(vT,2)}, v{vT+2}, {sr(SWS,4)}, s{sT1} offen offset:768 sc1')
    b(f's_mov_b64 exec, -1')
    gst(10)
    b(f'''
    v_mov_b32 v{vT+4}, 1
    s_lshl_b32 s{sT1}, s{sHEAD}, 2
    v_mov_b32 v{vT+5}, s{sT1}
    s_mov_b64 exec, 1
    s_waitcnt vmcnt(0)
    buffer_atomic_add v{vT+4}, v{vT+5}, {sr(SDBG,4)}, 0 offen sc0
    s_mov_b64 exec, -1
    v_lshrrev_b32 v{vT+2}, 5, v0
    v_and_b32 v{vT+3}, 31, v0
    v_lshlrev_b32 v{vT}, 10, v{vT+2}
    v_lshl_add_u32 v{vT+1}, v{vT+3}, 5, v{vT}
    v_mul_u32_u24 v{vT+2}, 384, v{vT+2}
    v_lshl_add_u32 v{vT+2}, v{vT+3}, 4, v{vT+2}
    ''')
    gst(11)
    b(f'''
    s_waitcnt vmcnt(0)
    v_readfirstlane_b32 s{sT1}, v{vT+4}
    ''')
    gst(12)
    b(f's_cmp_eq_u32 s{sT1}, 7')
    b('s_cbranch_scc0 ' + ('L_gdone' if cfg.stamps in (1, 4) else 'L_end2'))
    b('s_mov_b32 exec_lo, 0x00ffffff')
    b('s_mov_b32 exec_hi, 0x00ffffff')
    cD, cM = 100, 164
    for c in range(8):
        b(f'buffer_load_dwordx2 {vr(cM+2*c,2)}, v{vT}, {sr(SWS,4)}, s{sT0} offen offset:768 sc1')
        b(f'buffer_load_dwordx4 {vr(cD+8*c,4)}, v{vT+1}, {sr(SWS,4)}, s{sT0} offen sc1')
        b(f'buffer_load_dwordx4 {vr(cD+8*c+4,4)}, v{vT+1}, {sr(SWS,4)}, s{sT0} offen offset:16 sc1')
        if c < 7: b(f's_add_u32 s{sT0}, s{sT0}, 2048')
    b('s_waitcnt vmcnt(0)')
    b(f'v_max3_f32 v{vT+3}, v{cM}, v{cM+2}, v{cM+4}')
    b(f'v_max3_f32 v{vT+3}, v{vT+3}, v{cM+6}, v{cM+8}')
    b(f'v_max3_f32 v{vT+3}, v{vT+3}, v{cM+10}, v{cM+12}')
    b(f'v_max_f32 v{vT+3}, v{vT+3}, v{cM+14}')
    for c in range(8): b(f'v_sub_f32 v{cM+2*c}, v{cM+2*c}, v{vT+3}')
    for c in range(8): b(f'v_mul_f32 v{cM+2*c}, s{sC}, v{cM+2*c}')
    for c in range(8): b(f'v_exp_f32 v{cM+2*c}, v{cM+2*c}')
    b(f'v_mul_f32 v{vT+4}, v{cM}, v{cM+1}')
    for c in range(1, 8): b(f'v_fmac_f32 v{vT+4}, v{cM+2*c}, v{cM+2*c+1}')
    b(f'v_rcp_f32 v{vT+4}, v{vT+4}')
    for i in range(8): b(f'v_mul_f32 v{cD+i}, v{cM}, v{cD+i}')
    for c in range(1, 8):
        for i in range(8): b(f'v_fmac_f32 v{cD+i}, v{cM+2*c}, v{cD+8*c+i}')
    for i in range(8): b(f'v_mul_f32 v{cD+i}, v{vT+4}, v{cD+i}')
    for i in range(4): b(f'v_cvt_pk_bf16_f32 v{vF+i}, v{cD+2*i}, v{cD+2*i+1}')
    b(f'buffer_store_dwordx4 {vr(vF,4)}, v{vT+2}, {sr(SO,4)}, s{sHB} offen')
    if cfg.stamps == 1:
        b('s_mov_b64 exec, -1')
        gst(13)
        b('L_gdone:')
        store_stamps(b, 64)
    if cfg.stamps == 4:
        b('L_gdone:')
        endstamp(b)
    b('L_end2:')
    b('s_endpgm')

    b = newblock('G_qk'); b('G_qk:')
    for u in range(2):
        for t in range(6):
            b(f'ds_read_b128 {vr(gKF+24*u+4*t,4)}, v{vAK+2*u+(t&1)} offset:{128*(t>>1)}')
    done(b, 0)
    for u in range(2):
        for t in range(6):
            b(f'v_mfma_f32_16x16x32_bf16 {vr(gS+4*u,4)}, {vr(gKF+24*u+4*t,4)}, {vr(vQ+4*t,4)}, {vr(gS+4*u,4) if t else 0}')
    b(f'v_max3_f32 v{vT+2}, v{gM}, v{gS}, v{gS+1}')
    b(f'v_max3_f32 v{vT+2}, v{vT+2}, v{gS+2}, v{gS+3}')
    b(f'v_max3_f32 v{vT+2}, v{vT+2}, v{gS+4}, v{gS+5}')
    b(f'v_max3_f32 v{vT+2}, v{vT+2}, v{gS+6}, v{gS+7}')
    xmax(b, vT+2, vT+3)
    b(f'v_sub_f32 v{vT+4}, v{gM}, v{vT+2}')
    b(f'v_mul_f32 v{vT+3}, s{sC}, v{vT+2}')
    b(f'v_mul_f32 v{vT+4}, s{sC}, v{vT+4}')
    b(f'v_mov_b32 v{gM}, v{vT+2}')
    b(f'v_exp_f32 v{vT+4}, v{vT+4}')
    for i in range(8): b(f'v_fma_f32 v{gS+i}, v{gS+i}, s{sC}, -v{vT+3}')
    for i in range(8): b(f'v_exp_f32 v{gS+i}, v{gS+i}')
    for i in range(26): b(f'v_pk_mul_f32 {vr(vO+2*i,2)}, {vr(vO+2*i,2)}, {vr(vT+4,2)} op_sel_hi:[1,0]')
    for i in range(4): b(f'v_cvt_pk_bf16_f32 v{gP+i}, v{gS+2*i}, v{gS+2*i+1}')
    b.drain()
    b(f's_setpc_b64 {sr(sRET,2)}')

    b = newblock('G_pv'); b('G_pv:')
    def gvread(db):
        x = vF + 4*(db % 8)
        for u in range(2):
            b(f'ds_read_b64_tr_b16 {vr(x+2*u,2)}, v{vAV+4*u+(db&3)} offset:{128*(db>>2)}')
    for db in range(7): gvread(db)
    b(f'v_mfma_f32_16x16x32_bf16 {vr(vL,4)}, {vr(vONE,4)}, {vr(gP,4)}, {vr(vL,4)}')
    for db in range(12):
        b(f'v_mfma_f32_16x16x32_bf16 {vr(vO+4*db,4)}, {vr(vF+4*(db%8),4)}, {vr(gP,4)}, {vr(vO+4*db,4)}')
        if db + 7 < 12: gvread(db + 7)
        if db + 7 == 11: done(b, 32)
    b.drain()
    b('s_nop 7')
    b(f's_setpc_b64 {sr(sRET,2)}')

    def expand(name):
        blk = blocks[name]; out = []; pos = 0
        for at, callee in blk.calls:
            out += blk.out[pos:at] + expand(callee); pos = at
        return out + blk.out[pos:]
    for path in (['pro', 'cons', 'join', 'ojoin', 'lmain'], ['pro', 'cons', 'gload', 'join', 'gmain'], ['pro', 'loader'], ['pro', 'cons', 'join', 'ojoin', 'storer']):
        tr = sum((expand(n) for n in path), [])
        errs = check_trace(tr) + check_trace([i for i in tr if not i.opt])
        nb = sum(1 for i in tr if i.op == 's_barrier')
        print(f'; path {path[-1]}: {len(tr)} instrs, {nb} barriers, {len(errs)} hazard errors', file=sys.stderr)
        for e in errs: print('HAZARD', e, file=sys.stderr)
        assert not errs and nb == 1

    order = ['pro', 'loader', 'cons', 'gload', 'join', 'ojoin', 'lmain', 'F_poll', 'F_pollo', 'F_addr',
             'F_qk', 'F_pvA', 'F_pvB', 'storer', 'G_qk', 'G_pv', 'gmain']
    body = '\n'.join(blocks[n].text() for n in order)
    hdr = f'''; Windowed (|i-j| <= 32) + 2 global tokens attention, B=1 H=32 S=2048 D=192, bf16.
; @launch grid=(256,1,1) block=(448,1,1) lds={LDS_TOTAL}
.amdgcn_target "amdgcn-amd-amdhsa--gfx950"
.text
.globl {NAME}
.p2align 8
.type {NAME},@function
{NAME}:
'''
    tail = f'''
.fill 256, 4, 0xbf800000
.section .rodata,"a"
.p2align 6
.amdhsa_kernel {NAME}
  .amdhsa_next_free_vgpr 256
  .amdhsa_next_free_sgpr 102
  .amdhsa_accum_offset 256
  .amdhsa_group_segment_fixed_size 0
  .amdhsa_kernarg_size 64
  .amdhsa_user_sgpr_count 2
  .amdhsa_user_sgpr_kernarg_segment_ptr 1
  .amdhsa_system_sgpr_workgroup_id_x 1
  .amdhsa_float_denorm_mode_32 3
.end_amdhsa_kernel
'''
    return hdr + body + tail

if __name__ == '__main__':
    ap = argparse.ArgumentParser()
    ap.add_argument('--ntl', default='', help='cache policy suffix for K/V DMA loads')
    ap.add_argument('--ntq', default='')
    ap.add_argument('--nts', default='')
    ap.add_argument('--pf', type=int, default=0, help='KB of code to prefetch into L2')
    ap.add_argument('--sw', type=int, default=0)
    ap.add_argument('--L', type=int, default=8)
    ap.add_argument('--order', type=int, default=0)
    ap.add_argument('--barpos', type=int, default=6)
    ap.add_argument('--qmode', type=int, default=0)
    ap.add_argument('--lag', type=int, default=3)
    ap.add_argument('--wmap', type=lambda x: int(x, 0), default=0x1023040)
    ap.add_argument('--nts2', default='')
    ap.add_argument('--ntsw', type=int, default=12)
    ap.add_argument('--wb', type=int, default=0)
    ap.add_argument('--wbat', type=int, default=11)
    ap.add_argument('--selfst', type=int, default=1)
    ap.add_argument('--q1early', type=int, default=0)
    ap.add_argument('--prio_c', type=int, default=0)
    ap.add_argument('--prio_g', type=int, default=0)
    ap.add_argument('--prio_l', type=int, default=0)
    ap.add_argument('--stamps', type=int, default=0)
    ap.add_argument('-o', default='-')
    a = ap.parse_args()
    for k in ('ntl', 'ntq', 'nts', 'nts2'):
        v = getattr(a, k)
        setattr(a, k, (' ' + v.replace('+', ' ')) if v else '')
    s = gen(a)
    if a.o == '-': print(s)
    else: open(a.o, 'w').write(s)
```

```python
import sys, argparse
from asmlib import *

NAME = 'standalone__global_local_windowed_global_tokens__prompt_kernel'
UNIT = 6144
NR = 9
VOFF = NR * UNIT
QOFF = 2 * NR * UNIT
STG = QOFF + 4 * UNIT
VG = STG + 4 * UNIT
KG = VG + 1024
FLAG = KG + 1024
LDS_TOTAL = FLAG + 128
HEADB = 786432
TENSB = 25165824
CBITS = 0x3dd53b95

def vr(a, n=1): return f'v{a}' if n == 1 else f'v[{a}:{a+n-1}]'
def sr(a, n=1): return f's{a}' if n == 1 else f's[{a}:{a+n-1}]'

SQ, SK, SV, SO, SWS, SDBG = 4, 8, 12, 16, 20, 24
sW, sHEAD, sCH, sDIR, sW0, sSTEP, sHB = 28, 29, 30, 31, 32, 33, 34
sT0, sT1, sT2, sT3, sT4 = 35, 36, 37, 38, 39
sRET = 40
sC = 42
sOO = 43
sLAND, sNEED, sBUD, sW8 = 44, 45, 46, 47
sU0 = 48
sWL = 49
sMF, sML, sM1, sM2, sTRI, sMG = 50, 58, 66, 74, 82, 90
sAK, sAV, sAQ, sFIX = 50, 51, 52, 54
sLAST = 99
sN2, sN3 = 94, 95
sRING = 92
sX = 93
sSTAMP = 96
sROLE = 98

vP = 1
vTHR, vCNT, vCA, vPUB, vPA = 5, 6, 7, 8, 9
vFA, vDA, vDN = 1, 2, 3
vQO = 4
vOS, vOS0 = 5, 6
vSW = 7
vSR = 11
vLK = 13
vLV = 15
vVG = 19
vAK = 20
vAV = 30
vT = 50
vONE = 56
vKG = 60
vQ = 84
vAQ = 108
vS = 132
vPP = 156
vO = 168
vL = 216
vF = 220
vST = 252
vPOLL = 253

class VM:
    def __init__(self): self.q = []
    def add(self, tag, n): self.q += [tag] * n; assert len(self.q) <= 63, len(self.q)
    def wait(self, b, tags):
        idx = max([i for i, t in enumerate(self.q) if t in tags], default=-1)
        if idx < 0: return
        n = len(self.q) - 1 - idx
        self.q = self.q[idx + 1:]
        b(f's_waitcnt vmcnt({n})')

def stream_order(cfg):
    K = lambda *a: [('K', b) for b in a]
    V = lambda *a: [('V', b) for b in a]
    Q = lambda *a: [('Q', b) for b in a]
    st = Q(0) + K(-2, -1, 0, 1, 2) + Q(1) + K(3) + V(-2, -1, 0, 1, 2)
    if cfg.order == 0:
        for j in range(3, 17): st += Q(j - 1) + K(j + 1) + V(j)
        st += V(17)
    elif cfg.order == 4:
        for j in range(3, 13): st += Q(j - 1) + K(j + 1) + V(j)
        st += Q(12) + K(14) + Q(13) + K(15) + Q(14) + K(16) + Q(15) + K(17) + V(13, 14, 15, 16, 17)
    elif cfg.order == 5:
        for j in range(3, 13): st += Q(j - 1) + K(j + 1) + V(j)
        st += Q(12) + K(14) + Q(13) + K(15) + V(13) + Q(14) + K(16) + V(14) + Q(15) + K(17) + V(15, 16, 17)
    elif cfg.order == 6:
        for j in range(3, 13): st += Q(j - 1) + K(j + 1) + V(j)
        st += Q(12) + K(14, 15) + V(13, 14, 15) + Q(13) + Q(14) + K(16) + Q(15) + K(17) + V(16, 17)
    elif cfg.order == 7:
        for j in range(3, 10): st += Q(j - 1) + K(j + 1) + V(j)
        st += V(10) + K(11) + Q(9) + V(11) + K(12, 13) + V(12) + Q(10) + V(13) + K(14, 15) + V(14, 15)
        st += Q(11, 12, 13) + K(16) + Q(14) + K(17) + V(16) + Q(15) + V(17)
    elif cfg.order == 8:
        for j in range(3, 11): st += Q(j - 1) + K(j + 1) + V(j)
        st += V(11) + K(12) + Q(10) + K(13) + V(12, 13) + Q(11) + K(14, 15) + V(14, 15)
        st += Q(12, 13) + K(16) + Q(14) + K(17) + Q(15) + V(16, 17)
    elif cfg.order == 9:
        for j in range(3, 10): st += Q(j - 1) + K(j + 1) + V(j)
        st += V(10) + K(11) + Q(9) + V(11) + K(12, 13) + V(12) + Q(10) + V(13) + K(14, 15) + V(14) + Q(11) + V(15)
        st += Q(12, 13) + K(16) + Q(14) + K(17) + Q(15) + V(16, 17)
    elif cfg.order == 10:
        for j in range(3, 12): st += Q(j - 1) + K(j + 1) + V(j)
        st += V(12) + K(13) + Q(11) + K(14) + V(13) + K(15) + V(14, 15)
        st += Q(12, 13) + K(16) + Q(14) + K(17) + Q(15) + V(16, 17)
    elif cfg.order == 11:
        for j in range(3, 11): st += Q(j - 1) + K(j + 1) + V(j)
        st += V(11) + K(12) + Q(10) + K(13) + V(12, 13) + Q(11) + K(14, 15) + V(14, 15)
        st += Q(12) + K(16) + Q(13) + K(17) + Q(14) + V(16) + Q(15) + V(17)
    elif cfg.order in (12, 13, 14):
        for j in range(3, 11): st += Q(j - 1) + K(j + 1) + V(j)
        st += V(11) + K(12) + Q(10) + K(13) + V(12, 13) + Q(11) + K(14, 15)
        if cfg.order == 12: st += V(14, 15) + Q(12, 13, 14) + K(16) + Q(15) + K(17) + V(16, 17)
        if cfg.order == 13: st += V(14, 15) + Q(12, 13, 14, 15) + K(16, 17) + V(16, 17)
        if cfg.order == 14: st += Q(12) + V(14, 15) + Q(13, 14, 15) + K(16, 17) + V(16, 17)
    elif cfg.order == 15:
        for j in range(3, 13): st += Q(j - 1) + K(j + 1) + V(j)
        st += Q(12) + K(14, 15) + V(13, 14, 15) + Q(13, 14, 15) + K(16, 17) + V(16, 17)
    assert sorted(st) == sorted([(k, b) for k in 'KV' for b in range(-2, 18)] + Q(*range(16)))
    for k in 'KV': assert [b for kk, b in st if kk == k] == list(range(-2, 18))
    assert [b for kk, b in st if kk == 'Q'] == list(range(16))
    return st

def gen(cfg):
    ntl = cfg.ntl; nts = cfg.nts; ntq = cfg.ntq
    Lf = lambda n: cfg.L0 if n < cfg.Lsw0 else (cfg.L if n < cfg.Lsw else cfg.L2)
    st = stream_order(cfg)
    idx = {u: i for i, u in enumerate(st)}
    need = lambda k, b: idx[(k, b)] + 1
    NS = len(st)
    needqk = lambda u: max(need('K', u + 2), need('Q', u), need('V', u))
    need1 = lambda u: max(need('K', u + 1), need('Q', u), need('V', u))
    def dep_qk(u): return max([needqk(u)] + ([dep_pv(u - 4)] if u >= 4 else []))
    def dep_pv(u): return max(dep_qk(u), need('V', u + 2))
    def dep_gk(j): return max([need('K', 2*j + 1)] + ([dep_gv(j - 1)] if j else []))
    def dep_gv(j): return max(dep_gk(j), need('V', 2*j + 1))
    pub = [0]
    for n in range(NS): pub.append(max(pub[-1], n + 1 - Lf(n)))
    for n, (k, b) in enumerate(st):
        deps = []
        if k == 'Q':
            if b >= 4: deps.append(dep_qk(b - 4))
        elif b - NR >= -2:
            ob = b - NR
            f = dep_qk if k == 'K' else dep_pv
            deps += [f(u) for u in range(max(0, ob - 2), min(15, ob + 2) + 1)]
            if ob >= 0: deps.append((dep_gk if k == 'K' else dep_gv)(ob // 2))
        assert not deps or max(deps) <= pub[n], (k, b, deps, n)
    blocks = {}
    uid = [0]
    def cstamp(b, i):
        if cfg.stamps == 3:
            b.drain()
            b(f's_memtime {sr(sSTAMP,2)}')
            b('s_waitcnt lgkmcnt(0)')
            b(f'v_writelane_b32 v{vST}, s{sSTAMP}, {i}')
    def endstamp(b):
        if cfg.stamps == 4:
            b('s_mov_b64 exec, -1')
            b('s_waitcnt vmcnt(0)')
            b(f's_memrealtime {sr(sSTAMP,2)}')
            b(f's_lshl_b32 s{sT0}, s2, 7')
            b(f's_lshl_b32 s{sT1}, s{sROLE}, 2')
            b(f's_add_u32 s{sT0}, s{sT0}, s{sT1}')
            b(f's_add_u32 s{sT0}, s{sT0}, 0x8000000')
            b(f'v_lshlrev_b32 v{vT}, 5, v0')
            b('s_waitcnt lgkmcnt(0)')
            b(f'v_mov_b32 v{vST}, s{sSTAMP}')
            b(f'v_writelane_b32 v{vST}, s100, 1')
            b(f's_mov_b64 exec, 3')
            b(f'buffer_store_dword v{vST}, v{vT}, {sr(SWS,4)}, s{sT0} offen')
    def stamp(b, i):
        if cfg.stamps == 4: return
        if cfg.stamps == 3 and i not in (0, 14): return
        if cfg.stamps:
            b.drain()
            b(f's_memrealtime {sr(sSTAMP,2)}')
            b('s_waitcnt lgkmcnt(0)')
            b(f'v_writelane_b32 v{vST}, s{sSTAMP}, {i}')
    def store_stamps(b, off):
        if cfg.stamps:
            b('s_waitcnt vmcnt(0)')
            stamp(b, 14)
            b(f'v_writelane_b32 v{vST}, s100, 15')
            b(f's_lshl_b32 s{sT0}, s2, 7')
            b(f's_add_u32 s{sT0}, s{sT0}, {0x8000000+off}')
            b(f'v_lshlrev_b32 v{vT}, 2, v0')
            b(f's_mov_b64 exec, 0xffff')
            b(f'buffer_store_dword v{vST}, v{vT}, {sr(SWS,4)}, s{sT0} offen')
    def call(b, name):
        b.drain()
        b(f's_call_b64 {sr(sRET,2)}, {name}')
        b.calls.append((len(b.out), name))
    def newblock(name):
        b = Block(name); b.calls = []; blocks[name] = b; return b
    def setneed(b, vals, dst=sNEED):
        if isinstance(vals, int): b(f's_movk_i32 s{dst}, {vals}'); return
        pk = sum(v << (8*i) for i, v in enumerate(vals))
        b(f's_lshr_b32 s{dst}, {pk:#x}, s{sW8}')
        b(f's_and_b32 s{dst}, s{dst}, 0xff')
    def peek(b): b(f'ds_read_b32 v{vPOLL}, v{vFA}')
    def check(b, sn):
        uid[0] += 1
        b(f'v_readfirstlane_b32 s{sLAND}, v{vPOLL}')
        b(f's_cmp_ge_u32 s{sLAND}, s{sn}')
        b(f's_cbranch_scc1 L_ck{uid[0]}')
        b.opt = True
        b(f'L_lp{uid[0]}:')
        b(f'ds_read_b32 v{vPOLL}, v{vFA}')
        b(f's_sub_u32 s{sBUD}, s{sBUD}, 1')
        b(f's_cbranch_scc1 L_ex{uid[0]}')
        b('s_waitcnt lgkmcnt(0)')
        b.q.pop(); b.qo.pop()
        b(f'v_readfirstlane_b32 s{sLAND}, v{vPOLL}')
        b(f's_cmp_ge_u32 s{sLAND}, s{sn}')
        b(f's_cbranch_scc0 L_lp{uid[0]}')
        b(f's_branch L_ck{uid[0]}')
        b(f'L_ex{uid[0]}:')
        b(f's_mov_b32 s{sBUD}, 0')
        b('s_waitcnt lgkmcnt(0)')
        b.opt = False
        b(f'L_ck{uid[0]}:')
    def done(b, off):
        b('s_mov_b64 exec, 1')
        b(f'ds_write_b32 v{vDA}, v{vDN} offset:{off}')
        b('s_mov_b64 exec, -1')

    p = newblock('pro')
    if cfg.stamps: p(f's_memrealtime s[100:101]')
    p(f's_load_dwordx2 {sr(SK,2)}, s[0:1], 8')
    p(f's_load_dwordx2 {sr(SV,2)}, s[0:1], 16')
    p(f's_load_dwordx2 {sr(SQ,2)}, s[0:1], 0')
    p(f's_load_dwordx2 {sr(SO,2)}, s[0:1], 40')
    p(f's_load_dwordx2 {sr(SDBG,2)}, s[0:1], 48')
    p(f's_load_dwordx2 {sr(SWS,2)}, s[0:1], 56')
    p(f's_cmp_ge_u32 s2, 256')
    p(f's_cbranch_scc1 L_end')
    p(f"""
    v_lshrrev_b32 v{vT}, 6, v0
    v_and_b32 v0, 63, v0
    v_readfirstlane_b32 s{sROLE}, v{vT}
    s_and_b32 s{sT0}, s2, 7
    s_lshr_b32 s{sT1}, s2, 3
    s_lshr_b32 s{sT2}, s{sT1}, 3
    s_lshl_b32 s{sHEAD}, s{sT0}, 2
    s_add_u32 s{sHEAD}, s{sHEAD}, s{sT2}
    s_and_b32 s{sCH}, s{sT1}, 7
    s_and_b32 s{sDIR}, s{sCH}, 1
    s_mul_i32 s{sHB}, s{sHEAD}, {HEADB}
    s_mul_i32 s{sT0}, s{sCH}, {16*UNIT}
    s_add_u32 s{sT0}, s{sT0}, s{sHB}
    s_movk_i32 s{sSTEP}, {UNIT}
    s_cmp_eq_u32 s{sDIR}, 1
    s_cselect_b32 s{sSTEP}, {-UNIT}, s{sSTEP}
    s_cselect_b32 s{sT1}, {15*UNIT}, 0
    s_add_u32 s{sU0}, s{sT0}, s{sT1}
    v_lshlrev_b32 v{vT+1}, 4, v0
    s_mov_b32 s{sBUD}, 0x40000
    """)
    for srd, size in ((SQ, TENSB), (SK, TENSB), (SV, TENSB)):
        p(f's_mov_b32 s{srd+2}, {size}')
        p(f's_mov_b32 s{srd+3}, 0x20000')
    if cfg.stamps:
        p(f's_mov_b32 s{SWS+2}, 0x10000000')
        p(f's_mov_b32 s{SWS+3}, 0x20000')
        p(f'v_mov_b32 v{vST}, 0')
    p(f's_cmp_lg_u32 s{sROLE}, 0')
    p(f's_cbranch_scc1 L_cons')

    b = newblock('loader')
    b('L_loader:')
    if cfg.prio_l: b(f's_setprio {cfg.prio_l}')
    for j in range(3):
        if j: b(f'v_add_u32 v{vT+2}, {64*j}, v0')
        b(f'v_mul_u32_u24 v{vT+2}, 2731, {"v0" if j==0 else vr(vT+2)}')
        b(f'v_lshrrev_b32 v{vT+2}, 12, v{vT+2}')
        b(f'v_and_b32 v{vT+2}, 0x60, v{vT+2}')
        b(f'v_xor_b32 v{vP+j}, v{vT+2}, v{vT+1}')
    b(f"""
    s_lshl_b32 s{sT0}, s{sSTEP}, 1
    s_add_u32 s{sT2}, s{sCH}, 1
    s_and_b32 s{sT2}, s{sT2}, 7
    s_cmp_lt_u32 s{sT2}, 2
    s_cselect_b32 s{sFIX}, s{sT0}, 0
    s_sub_u32 s{sAK}, s{sU0}, s{sT0}
    s_add_u32 s{sAK}, s{sAK}, s{sFIX}
    s_mov_b32 s{sAV}, s{sAK}
    s_mov_b32 s{sAQ}, s{sU0}
    s_mov_b32 m0, {KG}
    v_and_b32 v{vCA}, 31, v0
    v_lshlrev_b32 v{vCA}, 2, v{vCA}
    v_add_u32 v{vCA}, {FLAG}, v{vCA}
    v_mov_b32 v{vTHR}, 0
    v_mov_b32 v{vCNT}, 0
    v_mov_b32 v{vPA}, {FLAG+64}
    s_waitcnt lgkmcnt(0)
    ds_write_b32 v{vCA}, v{vTHR}
    """)
    stamp(b, 0)
    b(f'buffer_load_dwordx4 v{vT+1}, {sr(SK,4)}, s{sHB} offen lds')
    b(f's_mov_b32 m0, {VG}')
    b(f'buffer_load_dwordx4 v{vT+1}, {sr(SV,4)}, s{sHB} offen lds')
    cur = {}
    for n, (k, u) in enumerate(st):
        if n == cfg.barpos:
            b('s_waitcnt lgkmcnt(0)'); b('s_barrier')
        thr = []
        if k == 'Q':
            if u >= 4: thr.append((u % 4, u // 4))
        elif u - NR >= -2:
            ob = u - NR; t = ob + 2; base = 0 if k == 'K' else 8
            thr.append((base + t % 4, t // 4 + 1))
            if ob >= 0: thr.append((base + 4, ob // 2 + 1))
        thr = [(l, v) for l, v in thr if cur.get(l, 0) < v]
        for l, v in thr:
            cur[l] = v
            b(f'v_writelane_b32 v{vTHR}, {v}, {l}')
        if thr:
            uid[0] += 1
            b(f'L_fr{uid[0]}:')
            b(f'v_cmp_lt_u32 vcc, v{vCNT}, v{vTHR}')
            b('s_nop 1')
            b(f's_cbranch_vccz L_ok{uid[0]}')
            b(f'ds_read_b32 v{vCNT}, v{vCA}')
            b(f's_sub_u32 s{sBUD}, s{sBUD}, 1')
            b('s_waitcnt lgkmcnt(0)')
            b(f's_cbranch_scc0 L_fr{uid[0]}')
            b(f's_mov_b32 s{sBUD}, 0')
            b(f'L_ok{uid[0]}:')
        srd, sa = {'K': (SK, sAK), 'V': (SV, sAV), 'Q': (SQ, sAQ)}[k]
        base = QOFF + (u % 4) * UNIT if k == 'Q' else ((u + 2) % NR) * UNIT + (VOFF if k == "V" else 0)
        pol = ntq if k == 'Q' else (ntl if 2 <= u <= 13 or cfg.nthalo else '')
        b(f's_mov_b32 m0, {base}')
        b(f's_add_u32 s{sX}, s{sa}, 3072')
        for j in range(3):
            b(f'buffer_load_dwordx4 v{vP+j}, {sr(srd,4)}, s{sa} offen offset:{1024*j}{pol} lds')
        b(f's_mov_b32 m0, {base+3072}')
        b(f's_add_u32 s{sa}, s{sa}, s{sSTEP}')
        for j in range(3):
            b(f'buffer_load_dwordx4 v{vP+j}, {sr(srd,4)}, s{sX} offen offset:{1024*j}{pol} lds')
        if pub[n + 1] > pub[n]:
            b(f'v_mov_b32 v{vPUB}, {pub[n + 1]}')
            b('s_mov_b64 exec, 1')
            b(f's_waitcnt vmcnt({6*Lf(n)})')
            b(f'ds_write_b32 v{vPA}, v{vPUB}')
            b('s_mov_b64 exec, -1')
            b.q = []
        if u == -1 and k != 'Q': b(f's_sub_u32 s{sAK if k == "K" else sAV}, s{sAK if k == "K" else sAV}, s{sFIX}')
        if cfg.stamps == 2 and n in (5, 12, 20, 30, 40, 48, 55): stamp(b, (5, 12, 20, 30, 40, 48, 55).index(n) + 1)
    b('s_mov_b64 exec, 1')
    for j in range(NS - pub[NS] - 1, -1, -1):
        b(f'v_mov_b32 v{vPUB}, {NS - j}')
        b(f's_waitcnt vmcnt({6*j})')
        b(f'ds_write_b32 v{vPA}, v{vPUB}')
    b.drain()
    if cfg.stamps == 2:
        b('s_mov_b64 exec, -1')
        store_stamps(b, 64)
    endstamp(b)
    b('s_endpgm')
    b = newblock('cons')
    b('L_cons:')
    b(f"""
    s_mov_b32 s{SO+2}, {TENSB}
    s_mov_b32 s{SO+3}, 0x20000
    v_and_b32 v{vT+3}, 15, v0
    v_lshrrev_b32 v{vT+4}, 4, v0
    v_mul_u32_u24 v{vT+5}, 384, v{vT+3}
    v_lshl_add_u32 v{vQO}, v{vT+4}, 4, v{vT+5}
    s_lshl_b32 s{sT0}, s{sROLE}, 2
    s_lshr_b32 s{sW}, {cfg.wmap:#x}, s{sT0}
    s_and_b32 s{sW}, s{sW}, 7
    s_waitcnt lgkmcnt(0)
    s_cmp_lg_u32 s{sROLE}, 1
    s_cbranch_scc1 L_join
    """)
    b = newblock('gload')
    if cfg.prio_g: b(f's_setprio {cfg.prio_g}')
    if cfg.pf:
        b(f's_and_b32 s{sT0}, s2, {cfg.pfw - 1 << 3}')
        b(f's_cmp_eq_u32 s{sT0}, 0')
        b('s_cbranch_scc0 L_nopf')
        b(f's_getpc_b64 {sr(sX+1,2)}')
        b('L_pc:')
        b(f's_sub_u32 s{sX+1}, s{sX+1}, L_pc-L_loader')
        b(f's_subb_u32 s{sX+2}, s{sX+2}, 0')
        b(f'v_mov_b32 v{vF+1}, s{sX+2}')
        b(f'v_add_co_u32 v{vF}, vcc, s{sX+1}, v{vT+1}')
        b(f'v_addc_co_u32 v{vF+1}, vcc, 0, v{vF+1}, vcc')
        for i in range(cfg.pf):
            if i and i % 4 == 0:
                b(f'v_add_co_u32 v{vF}, vcc, 4096, v{vF}')
                b(f'v_addc_co_u32 v{vF+1}, vcc, 0, v{vF+1}, vcc')
            b(f'global_load_dwordx4 {vr(vF+4,4)}, {vr(vF,2)}, off offset:{1024*(i%4)}')
        b('L_nopf:')
    b(f"""
    v_and_b32 v{vT+2}, 1, v0
    v_mul_u32_u24 v{vT+2}, 384, v{vT+2}
    v_lshl_add_u32 v{vT+2}, v{vT+4}, 4, v{vT+2}
    """)
    stamp(b, 0)
    for t in range(6):
        b(f'buffer_load_dwordx4 {vr(vQ+4*t,4)}, v{vT+2}, {sr(SQ,4)}, s{sHB} offen offset:{64*t}')

    b = newblock('join')
    b('L_join:')
    b(f"""
    s_mov_b32 s{sC}, {CBITS:#x}
    s_mov_b32 s{sLAND}, 0
    s_lshl_b32 s{sT0}, s{sW}, 2
    s_add_u32 s{sT0}, s{sT0}, {FLAG}
    v_mov_b32 v{vDA}, s{sT0}
    v_mov_b32 v{vFA}, {FLAG+64}
    v_lshlrev_b32 v{vT+2}, 4, v{vT+3}
    v_and_b32 v{vT+2}, 0x60, v{vT+2}
    v_xor_b32 v{vLK}, v{vT+2}, v{vQO}
    v_xor_b32 v{vLK+1}, 64, v{vLK}
    v_lshrrev_b32 v{vT+2}, 2, v0
    v_mul_u32_u24 v{vLV}, 384, v{vT+2}
    v_lshlrev_b32 v{vT+2}, 4, v{vT+2}
    v_and_b32 v{vT+2}, 0x60, v{vT+2}
    v_and_b32 v{vT+5}, 3, v0
    v_lshlrev_b32 v{vT+5}, 3, v{vT+5}
    v_add3_u32 v{vLV}, v{vLV}, v{vT+2}, v{vT+5}
    v_add_u32 v{vLV}, {VOFF}, v{vLV}
    v_xor_b32 v{vLV+1}, 32, v{vLV}
    v_xor_b32 v{vLV+2}, 64, v{vLV}
    v_xor_b32 v{vLV+3}, 0x60, v{vLV}
    v_mov_b32 v{vONE}, 0x3f803f80
    v_mov_b32 v{vONE+1}, 0x3f803f80
    v_mov_b32 v{vONE+2}, 0x3f803f80
    v_mov_b32 v{vONE+3}, 0x3f803f80
    s_cmp_eq_u32 s{sROLE}, 1
    s_cbranch_scc1 L_gmain
    """)
    b = newblock('ojoin')
    b(f"""
    v_and_b32 v{vT+2}, 1, v{vT+4}
    v_mul_u32_u24 v{vT+2}, 384, v{vT+2}
    v_add_u32 v{vT+2}, {VG}, v{vT+2}
    v_add_u32 v{vVG}, v{vT+2}, v{vT+5}
    v_lshrrev_b32 v{vT+2}, 3, v0
    v_and_b32 v{vT+5}, 7, v0
    v_mul_u32_u24 v{vOS}, 384, v{vT+2}
    v_lshl_add_u32 v{vOS}, v{vT+5}, 4, v{vOS}
    v_xor_b32 v{vT+5}, v{vT+5}, v{vT+4}
    v_lshlrev_b32 v{vT+5}, 4, v{vT+5}
    v_lshl_add_u32 v{vT+5}, v{vT+2}, 7, v{vT+5}
    v_add_u32 v{vSR}, {STG}, v{vT+5}
    v_xor_b32 v{vSR+1}, 64, v{vSR}
    s_cmp_eq_u32 s{sROLE}, 2
    s_cbranch_scc1 L_storer
    """)

    b = newblock('lmain')
    if cfg.prio_c: b(f's_setprio {cfg.prio_c}')
    b(f"""
    s_mul_i32 s{sT1}, s{sW}, s{sSTEP}
    s_add_u32 s{sW0}, s{sU0}, s{sT1}
    s_mul_i32 s{sWL}, s{sW}, {UNIT}
    s_lshl_b32 s{sW8}, s{sW}, 3
    s_mov_b32 s{sLAST}, 0
    v_add_u32 v{vSR}, s{sWL}, v{vSR}
    v_add_u32 v{vSR+1}, s{sWL}, v{vSR+1}
    s_add_u32 s{sT0}, s{sWL}, {STG}
    v_and_b32 v{vT+2}, 14, v{vT+3}
    v_xor_b32 v{vT+2}, v{vT+2}, v{vT+4}
    v_lshlrev_b32 v{vT+2}, 3, v{vT+2}
    v_lshl_add_u32 v{vT+2}, v{vT+3}, 7, v{vT+2}
    v_add_u32 v{vSW}, s{sT0}, v{vT+2}
    v_xor_b32 v{vSW+1}, 32, v{vSW}
    v_xor_b32 v{vSW+2}, 64, v{vSW}
    v_xor_b32 v{vSW+3}, 0x60, v{vSW}
    s_add_u32 s{sT0}, s{sWL}, {QOFF}
    v_add_u32 v{vAQ}, s{sT0}, v{vLK}
    v_add_u32 v{vAQ+1}, s{sT0}, v{vLK+1}
    s_mov_b32 s{sMG}, -1
    s_mov_b32 s{sMG+1}, 0
    v_bfe_u32 v{vT}, v0, 2, 1
    v_mul_u32_u24 v{vT}, 384, v{vT}
    v_lshl_add_u32 v{vT}, v{vT+4}, 4, v{vT}
    v_add_u32 v{vT}, {KG}, v{vT}
    v_lshlrev_b32 v{vT+4}, 2, v{vT+4}
    v_sub_u32 v{vT+2}, v{vT+4}, v{vT+3}
    """)
    for r in range(4):
        b(f'v_cmp_ge_i32 {sr(sM1+2*r,2)}, v{vT+2}, {-r}')
        b(f'v_cmp_le_i32 {sr(sM2+2*r,2)}, v{vT+2}, {-r}')
    b(f's_cmp_eq_u32 s{sDIR}, 1')
    for r in range(4):
        b(f's_cselect_b64 {sr(sTRI+2*r,2)}, {sr(sM2+2*r,2)}, {sr(sM1+2*r,2)}')
        b(f's_cselect_b64 {sr(sML+2*r,2)}, {sr(sM1+2*r,2)}, {sr(sM2+2*r,2)}')
    b(f"""
    s_cselect_b32 s{sT0}, -16, 16
    s_cselect_b32 s{sT1}, 240, 0
    s_lshl_b32 s{sT2}, s{sCH}, 8
    s_add_u32 s{sT1}, s{sT1}, s{sT2}
    s_sub_u32 s{sT2}, s{sW}, 2
    s_mul_i32 s{sT2}, s{sT2}, s{sT0}
    s_add_u32 s{sT1}, s{sT1}, s{sT2}
    s_sub_u32 s{sT1}, s{sT1}, 2
    s_movk_i32 s{sT3}, 2046
    """)
    for i, dst in enumerate((sMF, sM1, sM2)):
        b(f'v_add_u32 v{vT+2}, s{sT1}, v{vT+4}')
        if i < 2: b(f's_add_u32 s{sT1}, s{sT1}, s{sT0}')
        for r in range(4):
            if r: b(f'v_add_u32 v{vT+2}, 1, v{vT+2}')
            b(f'v_cmp_gt_u32 {sr(dst+2*r,2)}, s{sT3}, v{vT+2}')
    for r in range(4):
        b(f's_and_b64 {sr(sMF+2*r,2)}, {sr(sMF+2*r,2)}, {sr(sTRI+2*r,2)}')
    b(f's_mov_b32 s{sRING}, s{sWL}')
    b(f's_mul_i32 s{sOO}, s{sSTEP}, 12')
    b(f's_add_u32 s{sOO}, s{sOO}, s{sW0}')
    call(b, 'F_addr')
    b('s_barrier')
    stamp(b, 1)
    setneed(b, 1); call(b, 'F_poll')
    for t in range(6): b(f'ds_read_b128 {vr(vKG+4*t,4)}, v{vT} offset:{64*t}')
    for s in range(4):
        b(f'v_mov_b32 v{vDN}, {s+1}')
        if s == 3 and cfg.selfst: b(f's_mov_b32 s{sLAST}, 1')
        if s:
            b(f's_movk_i32 s{sNEED}, {s}')
            call(b, 'F_pollo')
        setneed(b, [need('K', 4*s + w + 2) for w in range(4)], sN2)
        setneed(b, [need('V', 4*s + w + 2) for w in range(4)], sN3)
        setneed(b, [need1(4*s + w) for w in range(4)])
        call(b, 'F_poll')
        stamp(b, 2 + 3*s)
        call(b, 'F_a')
        stamp(b, 4 + 3*s)
        if s == 0:
            for r in range(4):
                b(f's_mov_b64 {sr(sMF+2*r,2)}, {sr(sTRI+2*r,2)}')
                b(f's_mov_b64 {sr(sM1+2*r,2)}, -1')
                b(f's_mov_b64 {sr(sM2+2*r,2)}, -1')
        if s < 3:
            b(f's_add_u32 s{sRING}, s{sRING}, {4*UNIT}')
            b(f's_sub_u32 s{sT1}, s{sRING}, {VOFF}')
            b(f's_cselect_b32 s{sRING}, s{sRING}, s{sT1}')
            call(b, 'F_addr')
    endstamp(b)
    if cfg.stamps and cfg.stamps != 4:
        b(f's_cmp_eq_u32 s{sW}, {cfg.sw}')
        b('s_cbranch_scc0 L_end')
        store_stamps(b, 0)
    b('L_end:')
    b('s_endpgm')

    b = newblock('storer'); b('L_storer:')
    b(f"""
    s_cmp_eq_u32 s{sCH}, 0
    s_cselect_b32 s{sX+1}, 0xffff, 0
    s_mov_b32 s{sX+2}, 0
    v_bfrev_b32 v{vT+2}, 1
    v_cndmask_b32 v{vOS0}, v{vOS}, v{vT+2}, {sr(sX+1,2)}
    s_mov_b32 s{sOO}, s{sU0}
    v_mov_b32 v{vDA}, {FLAG}
    s_barrier
    """)
    for u in range(12 if cfg.selfst else 16):
        w = u % 4
        uid[0] += 1
        b(f'v_mov_b32 v{vDN}, {u//4 + 1}')
        b(f'L_sp{uid[0]}:')
        b(f'ds_read_b32 v{vPOLL}, v{vDA} offset:{80 + 4*w}')
        b(f's_sub_u32 s{sBUD}, s{sBUD}, 1')
        b(f's_cbranch_scc1 L_sx{uid[0]}')
        b('s_waitcnt lgkmcnt(0)')
        b(f'v_readfirstlane_b32 s{sLAND}, v{vPOLL}')
        b(f's_cmp_gt_u32 s{sLAND}, {u//4}')
        b(f's_cbranch_scc0 L_sp{uid[0]}')
        b(f's_branch L_sy{uid[0]}')
        b(f'L_sx{uid[0]}:')
        b(f's_mov_b32 s{sBUD}, 0')
        b('s_waitcnt lgkmcnt(0)')
        b(f'L_sy{uid[0]}:')
        rb = 16 + 24 * max(0, u - cfg.defer)
        assert rb + 24 <= 250
        for pz in range(3):
            for i in range(2):
                b(f'ds_read_b128 {vr(rb+8*pz+4*i,4)}, v{vSR+i} offset:{w*UNIT + 2048*pz + 1024*i}')
        done(b, 96 + 4*w)
        def put(u, rb):
            nts = cfg.nts if u < cfg.ntsw else cfg.nts2
            for pz in range(3):
                b(f'buffer_store_dwordx4 {vr(rb+8*pz,4)}, v{vOS0 if u == 0 else vOS}, {sr(SO,4)}, s{sOO} offen offset:{128*pz}{nts}')
                b(f'buffer_store_dwordx4 {vr(rb+8*pz+4,4)}, v{vOS}, {sr(SO,4)}, s{sOO} offen offset:{3072+128*pz}{nts}')
            b(f's_add_u32 s{sOO}, s{sOO}, s{sSTEP}')
        if u < cfg.defer or u > cfg.rel: put(u, rb)
        elif u == cfg.rel:
            for x in range(cfg.defer, u + 1): put(x, 16 + 24 * (x - cfg.defer))
        b.drain()
        if cfg.wb and u == cfg.wbat:
            b(f's_and_b32 s{sT0}, s2, {cfg.wb - 1 << 3}')
            b(f's_cmp_eq_u32 s{sT0}, 0')
            b('s_cbranch_scc0 L_nowb')
            b('buffer_wbl2 sc1')
            b('L_nowb:')
    endstamp(b)
    b('s_endpgm')

    b = newblock('F_pollo'); b('F_pollo:')
    b(f'ds_read_b32 v{vPOLL}, v{vDA} offset:96')
    b(f's_sub_u32 s{sBUD}, s{sBUD}, 1')
    b('s_cbranch_scc1 F_pollo_x')
    b('s_waitcnt lgkmcnt(0)')
    b(f'v_readfirstlane_b32 s{sT0}, v{vPOLL}')
    b(f's_cmp_ge_u32 s{sT0}, s{sNEED}')
    b('s_cbranch_scc0 F_pollo')
    b(f's_setpc_b64 {sr(sRET,2)}')
    b('F_pollo_x:')
    b(f's_mov_b32 s{sBUD}, 0')
    b('s_waitcnt lgkmcnt(0)')
    b(f's_setpc_b64 {sr(sRET,2)}')

    b = newblock('F_poll'); b('F_poll:')
    b(f's_cmp_ge_u32 s{sLAND}, s{sNEED}')
    b('s_cbranch_scc1 F_poll_ok')
    b(f'ds_read_b32 v{vPOLL}, v{vFA}')
    b(f's_sub_u32 s{sBUD}, s{sBUD}, 1')
    b('s_waitcnt lgkmcnt(0)')
    b(f'v_readfirstlane_b32 s{sLAND}, v{vPOLL}')
    b('s_nop 0')
    b('s_cbranch_scc0 F_poll')
    b(f's_mov_b32 s{sBUD}, 0')
    b('F_poll_ok:')
    b(f's_setpc_b64 {sr(sRET,2)}')

    b = newblock('F_addr'); b('F_addr:')
    for i in range(5):
        b(f's_add_u32 s{sT0}, s{sRING}, {i*UNIT}')
        b(f's_sub_u32 s{sT1}, s{sT0}, {VOFF}')
        b(f's_cselect_b32 s{sT0}, s{sT0}, s{sT1}')
        for j in range(2): b(f'v_add_u32 v{vAK+2*i+j}, s{sT0}, v{vLK+j}')
        for j in range(4): b(f'v_add_u32 v{vAV+4*i+j}, s{sT0}, v{vLV+j}')
    b(f's_setpc_b64 {sr(sRET,2)}')

    S = lambda blk, r=None: vr(vS+4*blk, 4) if r is None else f'v{vS+4*blk+r}'
    KS = ((0, 'g'), (1, 2), (3, 4))
    def vread1(n, h):
        ks, db = divmod(n, 12)
        x = vF + 4*(n % 8); blk = KS[ks][h]
        if blk == 'g': return f'ds_read_b64_tr_b16 {vr(x+2*h,2)}, v{vVG} offset:{32*db}'
        return f'ds_read_b64_tr_b16 {vr(x+2*h,2)}, v{vAV+4*blk+(db&3)} offset:{128*(db>>2)}'
    def vread(b, n):
        b(vread1(n, 0)); b(vread1(n, 1))
    def pvm(b, n):
        ks, db = divmod(n, 12)
        b(f'v_mfma_f32_16x16x32_bf16 {vr(vO+4*db,4)}, {vr(vF+4*(n%8),4)}, {vr(vPP+4*ks,4)}, {vr(vO+4*db,4) if ks else 0}')
    def lm(b, ks):
        b(f'v_mfma_f32_16x16x32_bf16 {vr(vL,4)}, {vr(vONE,4)}, {vr(vPP+4*ks,4)}, {vr(vL,4) if ks else 0}')
    def xmax(b, x, y, fill=None):
        for sw in ('v_permlane32_swap_b32', 'v_permlane16_swap_b32'):
            b(f'v_mov_b32 v{y}, v{x}')
            if fill:
                for _ in range(2):
                    if fill: b(fill.pop(0))
            b(f'{sw} v{x}, v{y}')
            b(f'v_max_f32 v{x}, v{x}, v{y}')
    b = newblock('F_a'); b('F_a:')
    cstamp(b, 1)
    kbuf = lambda blk, t: vr(vO + 24*(blk % 2) + 4*t, 4)
    kread = lambda blk, t: b(f'ds_read_b128 {kbuf(blk,t)}, v{vAK+2*blk+(t&1)} offset:{128*(t>>1)}')
    NEG = vT + 3
    cnd = lambda blk, m: [f'v_cndmask_b32 {S(blk,r)}, v{NEG}, {S(blk,r)}, {sr(m+2*r,2)}' for r in range(4)]
    mx = lambda blk: [f'v_max3_f32 v{vT}, v{vT}, {S(blk,0)}, {S(blk,1)}', f'v_max3_f32 v{vT}, v{vT}, {S(blk,2)}, {S(blk,3)}']
    for t in range(6): b(f'ds_read_b128 {vr(vQ+4*t,4)}, v{vAQ+(t&1)} offset:{128*(t>>1)}')
    for t in range(6): kread(0, t)
    b(f'v_mov_b32 v{NEG}, 0xff800000')
    b(f'v_mov_b32 v{vPP+3}, 0')
    for t in range(6):
        b(f'v_mfma_f32_16x16x32_bf16 {S(5)}, {vr(vKG+4*t,4)}, {vr(vQ+4*t,4)}, {S(5) if t else 0}')
        kread(1, t)
    b.ahead = cfg.ahk
    fill = {2: [f'v_cndmask_b32 v{vT}, v{NEG}, {S(5,0)}, {sr(sMG,2)}'] + cnd(0, sMF) + [f'v_mov_b32 {S(5,0)}, v{vT}'] + mx(0),
            3: cnd(1, sM1) + mx(1), 4: cnd(2, sM2) + mx(2) + mx(3)}
    for blk in range(5):
        if blk == 2: peek(b)
        if blk == 3:
            check(b, sN2)
            for t in range(6): kread(4, t)
            done(b, 0)
        for t in range(6):
            b(f'v_mfma_f32_16x16x32_bf16 {S(blk)}, {kbuf(blk,t)}, {vr(vQ+4*t,4)}, {S(blk) if t else 0}')
            if blk < 2: kread(blk+2, t)
            for _ in range(2):
                if fill.get(blk): b(fill[blk].pop(0))
    assert not any(fill.values())
    b.ahead = 0
    cstamp(b, 2)
    pre = [vread1(n, h) for n in range(7) for h in range(2)]
    for _ in range(8): b(pre.pop(0))
    for x in cnd(4, sML) + mx(4): b(x)
    xmax(b, vT, vT+1, pre)
    b(f'v_mul_f32 v{vT+1}, s{sC}, v{vT}')
    while pre: b(pre.pop(0))
    fma = lambda blk, r: f'v_fma_f32 {S(blk,r)}, {S(blk,r)}, s{sC}, -v{vT+1}'
    ex = lambda blk, r: f'v_exp_f32 {S(blk,r)}, {S(blk,r)}'
    pbase = {0: 0, 1: 4, 2: 6, 3: 8, 4: 10}
    cv = lambda blk, h: f'v_cvt_pk_bf16_f32 v{vPP+pbase[blk]+h}, {S(blk,2*h)}, {S(blk,2*h+1)}'
    for r in range(4): b(fma(0, r))
    b(fma(5, 0))
    for r in range(4): b(ex(0, r))
    b(ex(5, 0))
    b(cv(0, 0)); b(cv(0, 1))
    b(f'v_cvt_pk_bf16_f32 v{vPP+2}, {S(5,0)}, 0')
    rest = []
    for blk in range(1, 5):
        rest += [fma(blk, r) for r in range(4)] + [ex(blk, r) for r in range(4)]
        if blk > 1: rest += [cv(blk-1, 0), cv(blk-1, 1)]
    rest += [cv(4, 0), cv(4, 1)]
    b(rest.pop(0)); b(rest.pop(0))
    cstamp(b, 3)
    b.ahead = cfg.ahv
    lm(b, 0)
    for n in range(24):
        pvm(b, n)
        if n == 12: peek(b)
        if n == 17:
            b.ahead = 0
            check(b, sN3)
            cstamp(b, 4)
            b(f's_cmp_eq_u32 s{sLAST}, 1')
            b.ahead = cfg.ahv
        vread(b, n + 7)
        for _ in range(cfg.vfill):
            if rest and (n < 11 or n > 11): b(rest.pop(0))
        if n == 11:
            while any(x.startswith(f'v_cvt_pk_bf16_f32 v{vPP+pbase[2]+1},') for x in rest): b(rest.pop(0))
        if n == 13: lm(b, 1)
        if n == 15:
            while rest: b(rest.pop(0))
        if n == 16: lm(b, 2)
        if n == 21: b(f'v_rcp_f32 v{vT}, v{vL}')
    b.ahead = 0
    cstamp(b, 5)
    def optional(f):
        if not cfg.selfst: return
        uid[0] += 1
        b(f's_cbranch_scc0 L_sk{uid[0]}')
        b.opt = True; f(); b.opt = False
        b(f'L_sk{uid[0]}:')
    def ostore(pz):
        b(f'buffer_store_dwordx4 {vr(vS+8*pz,4)}, v{vOS}, {sr(SO,4)}, s{sOO} offen offset:{128*pz}{cfg.nts2}')
        b(f'buffer_store_dwordx4 {vr(vS+8*pz+4,4)}, v{vOS}, {sr(SO,4)}, s{sOO} offen offset:{3072+128*pz}{cfg.nts2}')
    def oread(pz):
        b(f'ds_read_b128 {vr(vS+8*pz,4)}, v{vSR} offset:{2048*pz}')
        b(f'ds_read_b128 {vr(vS+8*pz+4,4)}, v{vSR+1} offset:{2048*pz+1024}')
    def fin(db):
        if cfg.pk:
            for h in range(2):
                b(f'v_pk_mul_f32 {vr(vO+4*db+2*h,2)}, {vr(vO+4*db+2*h,2)}, {vr(vT,2)} op_sel_hi:[1,0]')
        else:
            for r in range(4): b(f'v_mul_f32 v{vO+4*db+r}, v{vT}, v{vO+4*db+r}')
        for h in range(2):
            b(f'v_cvt_pk_bf16_f32 v{vO+4*db+h}, v{vO+4*db+2*h}, v{vO+4*db+2*h+1}')
        b(f'ds_write_b64 v{vSW+(db&3)}, {vr(vO+4*db,2)} offset:{2048*(db//4)}')
        if db == 11: done(b, 80)
        if cfg.stpos == 0:
            if db % 4 == 3: optional(lambda: oread(db // 4))
            if db % 4 == 1 and db > 4: optional(lambda: ostore(db // 4 - 1))
        elif cfg.stpos == 1:
            if db == 3: optional(lambda: oread(0))
            if db == 7: optional(lambda: (oread(1), ostore(0)))
            if db == 11: optional(lambda: (oread(2), ostore(1), ostore(2)))
        else:
            if db == 11: optional(lambda: (oread(0), oread(1), oread(2), ostore(0), ostore(1), ostore(2)))
    LAG = cfg.lag
    for n in range(24, 36):
        pvm(b, n)
        if n + 7 < 36: vread(b, n + 7)
        if n + 7 == 35: done(b, 32)
        if n - 24 - LAG >= 0: fin(n - 24 - LAG)
    for db in range(12 - LAG, 12): fin(db)
    if cfg.stpos == 0: optional(lambda: ostore(2))
    cstamp(b, 6)
    b.drain()
    b(f's_setpc_b64 {sr(sRET,2)}')

    gKF, gS, gP = 108, 156, 164
    gM = vT
    b = newblock('gmain'); b('L_gmain:')
    b(f's_mov_b32 s{SDBG+2}, 256')
    b(f's_mov_b32 s{SDBG+3}, 0x20000')
    if not cfg.stamps:
        b(f's_mov_b32 s{SWS+2}, {256*2048}')
        b(f's_mov_b32 s{SWS+3}, 0x20000')
    for i in range(52): b(f'v_mov_b32 v{vO+i}, 0')
    b(f'v_mov_b32 v{gM}, 0xff800000')
    gst = lambda i: stamp(b, i) if cfg.stamps == 1 else None
    b('s_barrier')
    gst(1)
    b('s_waitcnt vmcnt(0)')
    for j in range(8):
        for u in range(2):
            base = ((2*j + u + 2) % NR) * UNIT
            for x in range(2): b(f'v_add_u32 v{vAK+2*u+x}, {base}, v{vLK+x}')
            for x in range(4): b(f'v_add_u32 v{vAV+4*u+x}, {base}, v{vLV+x}')
        b(f'v_mov_b32 v{vDN}, {j+1}')
        setneed(b, need('K', 2*j + 1)); call(b, 'F_poll')
        call(b, 'G_qk')
        setneed(b, need('V', 2*j + 1)); call(b, 'F_poll')
        gst(2 + j)
        call(b, 'G_pv')
    if cfg.nog == 1: b('s_endpgm')
    b(f'''
    s_lshl_b32 s{sT0}, s{sHEAD}, 14
    s_lshl_b32 s{sT1}, s{sCH}, 11
    s_add_u32 s{sT1}, s{sT1}, s{sT0}
    v_and_b32 v{vT+2}, 1, v0
    v_lshlrev_b32 v{vT+2}, 10, v{vT+2}
    v_and_b32 v{vT+3}, 0x30, v0
    v_add_u32 v{vT+3}, v{vT+3}, v{vT+2}
    s_mov_b32 exec_lo, 0x00030003
    s_mov_b32 exec_hi, 0x00030003
    ''')
    for db in range(12):
        b(f'buffer_store_dwordx4 {vr(vO+4*db,4)}, v{vT+3}, {sr(SWS,4)}, s{sT1} offen offset:{64*db} sc1')
    b(f'v_mov_b32 v{vT+1}, v{vL}')
    b(f's_mov_b64 exec, 3')
    b(f'buffer_store_dwordx2 {vr(vT,2)}, v{vT+2}, {sr(SWS,4)}, s{sT1} offen offset:768 sc1')
    b(f's_mov_b64 exec, -1')
    gst(10)
    if cfg.nog == 2: b('s_endpgm')
    b(f'''
    v_mov_b32 v{vT+4}, 1
    s_lshl_b32 s{sT1}, s{sHEAD}, 2
    v_mov_b32 v{vT+5}, s{sT1}
    s_mov_b64 exec, 1
    s_waitcnt vmcnt(0)
    buffer_atomic_add v{vT+4}, v{vT+5}, {sr(SDBG,4)}, 0 offen sc0
    s_mov_b64 exec, -1
    v_lshrrev_b32 v{vT+2}, 5, v0
    v_and_b32 v{vT+3}, 31, v0
    v_lshlrev_b32 v{vT}, 10, v{vT+2}
    v_lshl_add_u32 v{vT+1}, v{vT+3}, 5, v{vT}
    v_mul_u32_u24 v{vT+2}, 384, v{vT+2}
    v_lshl_add_u32 v{vT+2}, v{vT+3}, 4, v{vT+2}
    ''')
    gst(11)
    b(f'''
    s_waitcnt vmcnt(0)
    v_readfirstlane_b32 s{sT1}, v{vT+4}
    ''')
    gst(12)
    if cfg.nog == 3: b('s_endpgm')
    b(f's_cmp_eq_u32 s{sT1}, 7')
    b('s_cbranch_scc0 ' + ('L_gdone' if cfg.stamps in (1, 4) else 'L_end2'))
    b('s_mov_b32 exec_lo, 0x00ffffff')
    b('s_mov_b32 exec_hi, 0x00ffffff')
    cD, cM = 100, 164
    for c in range(8):
        b(f'buffer_load_dwordx2 {vr(cM+2*c,2)}, v{vT}, {sr(SWS,4)}, s{sT0} offen offset:768 sc1')
        b(f'buffer_load_dwordx4 {vr(cD+8*c,4)}, v{vT+1}, {sr(SWS,4)}, s{sT0} offen sc1')
        b(f'buffer_load_dwordx4 {vr(cD+8*c+4,4)}, v{vT+1}, {sr(SWS,4)}, s{sT0} offen offset:16 sc1')
        if c < 7: b(f's_add_u32 s{sT0}, s{sT0}, 2048')
    b('s_waitcnt vmcnt(0)')
    b(f'v_max3_f32 v{vT+3}, v{cM}, v{cM+2}, v{cM+4}')
    b(f'v_max3_f32 v{vT+3}, v{vT+3}, v{cM+6}, v{cM+8}')
    b(f'v_max3_f32 v{vT+3}, v{vT+3}, v{cM+10}, v{cM+12}')
    b(f'v_max_f32 v{vT+3}, v{vT+3}, v{cM+14}')
    for c in range(8): b(f'v_sub_f32 v{cM+2*c}, v{cM+2*c}, v{vT+3}')
    for c in range(8): b(f'v_mul_f32 v{cM+2*c}, s{sC}, v{cM+2*c}')
    for c in range(8): b(f'v_exp_f32 v{cM+2*c}, v{cM+2*c}')
    b(f'v_mul_f32 v{vT+4}, v{cM}, v{cM+1}')
    for c in range(1, 8): b(f'v_fmac_f32 v{vT+4}, v{cM+2*c}, v{cM+2*c+1}')
    b(f'v_rcp_f32 v{vT+4}, v{vT+4}')
    for i in range(8): b(f'v_mul_f32 v{cD+i}, v{cM}, v{cD+i}')
    for c in range(1, 8):
        for i in range(8): b(f'v_fmac_f32 v{cD+i}, v{cM+2*c}, v{cD+8*c+i}')
    for i in range(8): b(f'v_mul_f32 v{cD+i}, v{vT+4}, v{cD+i}')
    for i in range(4): b(f'v_cvt_pk_bf16_f32 v{vF+i}, v{cD+2*i}, v{cD+2*i+1}')
    b(f'buffer_store_dwordx4 {vr(vF,4)}, v{vT+2}, {sr(SO,4)}, s{sHB} offen')
    if cfg.stamps == 1:
        b('s_mov_b64 exec, -1')
        gst(13)
        b('L_gdone:')
        store_stamps(b, 64)
    if cfg.stamps == 4:
        b('L_gdone:')
        endstamp(b)
    b('L_end2:')
    b('s_endpgm')

    b = newblock('G_qk'); b('G_qk:')
    for u in range(2):
        for t in range(6):
            b(f'ds_read_b128 {vr(gKF+24*u+4*t,4)}, v{vAK+2*u+(t&1)} offset:{128*(t>>1)}')
    done(b, 0)
    for u in range(2):
        for t in range(6):
            b(f'v_mfma_f32_16x16x32_bf16 {vr(gS+4*u,4)}, {vr(gKF+24*u+4*t,4)}, {vr(vQ+4*t,4)}, {vr(gS+4*u,4) if t else 0}')
    b(f'v_max3_f32 v{vT+2}, v{gM}, v{gS}, v{gS+1}')
    b(f'v_max3_f32 v{vT+2}, v{vT+2}, v{gS+2}, v{gS+3}')
    b(f'v_max3_f32 v{vT+2}, v{vT+2}, v{gS+4}, v{gS+5}')
    b(f'v_max3_f32 v{vT+2}, v{vT+2}, v{gS+6}, v{gS+7}')
    xmax(b, vT+2, vT+3)
    b(f'v_sub_f32 v{vT+4}, v{gM}, v{vT+2}')
    b(f'v_mul_f32 v{vT+3}, s{sC}, v{vT+2}')
    b(f'v_mul_f32 v{vT+4}, s{sC}, v{vT+4}')
    b(f'v_mov_b32 v{gM}, v{vT+2}')
    b(f'v_exp_f32 v{vT+4}, v{vT+4}')
    for i in range(8): b(f'v_fma_f32 v{gS+i}, v{gS+i}, s{sC}, -v{vT+3}')
    for i in range(8): b(f'v_exp_f32 v{gS+i}, v{gS+i}')
    for i in range(26): b(f'v_pk_mul_f32 {vr(vO+2*i,2)}, {vr(vO+2*i,2)}, {vr(vT+4,2)} op_sel_hi:[1,0]')
    for i in range(4): b(f'v_cvt_pk_bf16_f32 v{gP+i}, v{gS+2*i}, v{gS+2*i+1}')
    b.drain()
    b(f's_setpc_b64 {sr(sRET,2)}')

    b = newblock('G_pv'); b('G_pv:')
    def gvread(db):
        x = vF + 4*(db % 8)
        for u in range(2):
            b(f'ds_read_b64_tr_b16 {vr(x+2*u,2)}, v{vAV+4*u+(db&3)} offset:{128*(db>>2)}')
    for db in range(7): gvread(db)
    b(f'v_mfma_f32_16x16x32_bf16 {vr(vL,4)}, {vr(vONE,4)}, {vr(gP,4)}, {vr(vL,4)}')
    for db in range(12):
        b(f'v_mfma_f32_16x16x32_bf16 {vr(vO+4*db,4)}, {vr(vF+4*(db%8),4)}, {vr(gP,4)}, {vr(vO+4*db,4)}')
        if db + 7 < 12: gvread(db + 7)
        if db + 7 == 11: done(b, 32)
    b.drain()
    b('s_nop 7')
    b(f's_setpc_b64 {sr(sRET,2)}')

    def expand(name):
        blk = blocks[name]; out = []; pos = 0
        for at, callee in blk.calls:
            out += blk.out[pos:at] + expand(callee); pos = at
        return out + blk.out[pos:]
    for path in (['pro', 'cons', 'join', 'ojoin', 'lmain'], ['pro', 'cons', 'gload', 'join', 'gmain'], ['pro', 'loader'], ['pro', 'cons', 'join', 'ojoin', 'storer']):
        tr = sum((expand(n) for n in path), [])
        errs = check_trace(tr) + check_trace([i for i in tr if not i.opt])
        nb = sum(1 for i in tr if i.op == 's_barrier')
        print(f'; path {path[-1]}: {len(tr)} instrs, {nb} barriers, {len(errs)} hazard errors', file=sys.stderr)
        for e in errs: print('HAZARD', e, file=sys.stderr)
        assert not errs and nb == 1

    order = ['pro', 'loader', 'cons', 'gload', 'join', 'ojoin', 'lmain', 'F_poll', 'F_pollo', 'F_addr',
             'F_a', 'storer', 'G_qk', 'G_pv', 'gmain']
    body = '\n'.join(blocks[n].text() for n in order)
    hdr = f'''; Windowed (|i-j| <= 32) + 2 global tokens attention, B=1 H=32 S=2048 D=192, bf16.
; @launch grid=(256,1,1) block=(448,1,1) lds={LDS_TOTAL}
.amdgcn_target "amdgcn-amd-amdhsa--gfx950"
.text
.globl {NAME}
.p2align 8
.type {NAME},@function
{NAME}:
'''
    tail = f'''
.fill 256, 4, 0xbf800000
.section .rodata,"a"
.p2align 6
.amdhsa_kernel {NAME}
  .amdhsa_next_free_vgpr 256
  .amdhsa_next_free_sgpr 102
  .amdhsa_accum_offset 256
  .amdhsa_group_segment_fixed_size 0
  .amdhsa_kernarg_size 64
  .amdhsa_user_sgpr_count 2
  .amdhsa_user_sgpr_kernarg_segment_ptr 1
  .amdhsa_system_sgpr_workgroup_id_x 1
  .amdhsa_float_denorm_mode_32 3
.end_amdhsa_kernel
'''
    return hdr + body + tail

if __name__ == '__main__':
    ap = argparse.ArgumentParser()
    ap.add_argument('--ntl', default='', help='cache policy suffix for K/V DMA loads')
    ap.add_argument('--ntq', default='')
    ap.add_argument('--nts', default='')
    ap.add_argument('--pf', type=int, default=0, help='KB of code to prefetch into L2')
    ap.add_argument('--sw', type=int, default=0)
    ap.add_argument('--L', type=int, default=8)
    ap.add_argument('--order', type=int, default=0)
    ap.add_argument('--barpos', type=int, default=6)
    ap.add_argument('--qmode', type=int, default=0)
    ap.add_argument('--lag', type=int, default=3)
    ap.add_argument('--wmap', type=lambda x: int(x, 0), default=0x1023040)
    ap.add_argument('--nts2', default='')
    ap.add_argument('--ntsw', type=int, default=12)
    ap.add_argument('--wb', type=int, default=0)
    ap.add_argument('--wbat', type=int, default=11)
    ap.add_argument('--pfw', type=int, default=32)
    ap.add_argument('--nthalo', type=int, default=0)
    ap.add_argument('--defer', type=int, default=16)
    ap.add_argument('--rel', type=int, default=11)
    ap.add_argument('--ahk', type=int, default=1)
    ap.add_argument('--ahv', type=int, default=2)
    ap.add_argument('--vfill', type=int, default=3)
    ap.add_argument('--pk', type=int, default=0)
    ap.add_argument('--stpos', type=int, default=1)
    ap.add_argument('--diag', type=int, default=0)
    ap.add_argument('--nog', type=int, default=0)
    ap.add_argument('--L0', type=int, default=0)
    ap.add_argument('--Lsw0', type=int, default=0)
    ap.add_argument('--L2', type=int, default=0)
    ap.add_argument('--Lsw', type=int, default=99)
    ap.add_argument('--selfst', type=int, default=1)
    ap.add_argument('--q1early', type=int, default=0)
    ap.add_argument('--prio_c', type=int, default=2)
    ap.add_argument('--prio_g', type=int, default=0)
    ap.add_argument('--prio_l', type=int, default=0)
    ap.add_argument('--stamps', type=int, default=0)
    ap.add_argument('-o', default='-')
    a = ap.parse_args()
    for k in ('ntl', 'ntq', 'nts', 'nts2'):
        v = getattr(a, k)
        setattr(a, k, (' ' + v.replace('+', ' ')) if v else '')
    s = gen(a)
    if a.o == '-': print(s)
    else: open(a.o, 'w').write(s)
```
